```python
import torch

def _softmax(x, axis=-1):
    return torch.softmax(x, dim=axis)
def _gelu(x):
    return torch.nn.functional.gelu(x, approximate="tanh")
def _silu(x):
    return torch.nn.functional.silu(x)
def _sigmoid(x):
    return torch.sigmoid(x)
def _layernorm(x, axis=-1, eps=1e-5):
    m = x.mean(dim=axis, keepdim=True)
    v = x.var(dim=axis, keepdim=True, unbiased=False)
    return (x - m) / torch.sqrt(v + eps)
def _scatter_add(tgt, idx, src, axis=0):
    return tgt.clone().index_add_(axis, idx, src)
def _segment_sum(src, seg, n):
    out = torch.zeros((n,) + src.shape[1:], dtype=src.dtype)
    return out.index_add_(0, seg, src)
def _pad(x, pw):
    flat = tuple(v for pair in reversed(pw) for v in pair)
    return torch.nn.functional.pad(x, flat)

kernel_name = 'sequential_preLN__grouped_kv_mqa__swiglu_ffn__prompt'

def setup_inputs():

    _w = (lambda a: (lambda t: t.to(torch.bfloat16) if t.is_floating_point() else t)(torch.as_tensor(a)))
    def _A_setup():
        B, S, D, H = 1, 2048, 640, 32
        Dh = D // H
        return {
            "x": _w((lambda *s: torch.randn(*s, dtype=torch.bfloat16) * 0.05)(B, S, D)),
            "wq": _w((lambda *s: torch.randn(*s, dtype=torch.bfloat16) * 0.05)(D, H * Dh)),
            "wk": _w((lambda *s: torch.randn(*s, dtype=torch.bfloat16) * 0.05)(D, Dh)),
            "wv": _w((lambda *s: torch.randn(*s, dtype=torch.bfloat16) * 0.05)(D, Dh)),
            "wo": _w((lambda *s: torch.randn(*s, dtype=torch.bfloat16) * 0.05)(H * Dh, D)),
        }
    _A_in = _A_setup()

    def _B_setup():
        B, S, D, F = 1, 2048, 640, 1536
        return {
            "x": _w((lambda *s: torch.randn(*s, dtype=torch.bfloat16) * 0.05)(B, S, D)),
            "w_gate": _w((lambda *s: torch.randn(*s, dtype=torch.bfloat16) * 0.05)(D, F)),
            "w_up": _w((lambda *s: torch.randn(*s, dtype=torch.bfloat16) * 0.05)(D, F)),
            "w_down": _w((lambda *s: torch.randn(*s, dtype=torch.bfloat16) * 0.05)(F, D)),
        }
    _B_in = _B_setup()

    return {
        "A_x": _A_in["x"],
        "A_wq": _A_in["wq"],
        "A_wk": _A_in["wk"],
        "A_wv": _A_in["wv"],
        "A_wo": _A_in["wo"],
        "B_x": _B_in["x"],
        "B_w_gate": _B_in["w_gate"],
        "B_w_up": _B_in["w_up"],
        "B_w_down": _B_in["w_down"],
    }

def reference(A_x, A_wq, A_wk, A_wv, A_wo, B_x, B_w_gate, B_w_up, B_w_down):
    def _A_ref(x, wq, wk, wv, wo):
        B, S, D = x.shape
        H = 32
        Dh = D // H
        q = (lambda x, *d: x.permute(*d))((x @ wq).reshape(B, S, H, Dh), 0, 2, 1, 3)
        k = x @ wk
        v = x @ wv
        scores = torch.einsum("bhqd,bkd->bhqk", q, k) * (Dh ** -0.5)
        p = _softmax(scores, axis=-1)
        o = torch.einsum("bhqk,bkd->bhqd", p, v)
        return (lambda x, *d: x.permute(*d))(o, 0, 2, 1, 3).reshape(B, S, H * Dh) @ wo

    def _B_ref(x, w_gate, w_up, w_down):
        g = _silu(x @ w_gate)
        u = x @ w_up
        return (g * u) @ w_down

    x = A_x
    h = x + _A_ref(_layernorm(x, axis=-1), A_wq, A_wk, A_wv, A_wo)
    h2 = h + _B_ref(_layernorm(h, axis=-1), B_w_gate, B_w_up, B_w_down)
    return h2
```

```python
import re

TRANS = ("v_exp_f32", "v_log_f32", "v_rcp_f32", "v_rsq_f32", "v_sqrt_f32", "v_sin_f32", "v_cos_f32",
         "v_rcp_iflag_f32")

MFMA_PASSES = {
    "v_mfma_f32_32x32x16_bf16": 8,
    "v_mfma_f32_16x16x32_bf16": 4,
    "v_mfma_f32_32x32x4bf16_1k": 16,
    "v_mfma_f32_32x32x8bf16_1k": 8,
    "v_mfma_f32_16x16x16bf16_1k": 4,
    "v_smfmac_f32_32x32x32_bf16": 8,
    "v_mfma_f32_16x16x4_f32": 8,
}
_PI = {2: 0, 4: 1, 8: 2, 16: 3}
W_D_TO_C_OVERLAP = (4, 6, 10, 18)
W_D_TO_AB = (5, 8, 12, 20)
W_D_TO_VALU = (5, 8, 12, 20)
W_C_WAR = (1, 3, 7, 15)

_REG = re.compile(r"^(-|abs\()?([vas])(?:\[(\d+):(\d+)\]|(\d+))\)?$")


def regs_of(tok):
    tok = tok.strip()
    if tok in ("vcc", "exec"):
        return [(tok, 0), (tok, 1)]
    if tok in ("vcc_lo", "exec_lo"):
        return [(tok[:-3], 0)]
    if tok in ("vcc_hi", "exec_hi"):
        return [(tok[:-3], 1)]
    if tok == "m0":
        return [("m0", 0)]
    m = _REG.match(tok)
    if not m:
        return []
    if m.group(3) is not None:
        return [(m.group(2), i) for i in range(int(m.group(3)), int(m.group(4)) + 1)]
    return [(m.group(2), int(m.group(5)))]


class Ins:
    __slots__ = ("text", "op", "kind", "defs", "uses", "ab", "c", "passes", "ws", "target", "store_data")

    def __init__(self, text):
        self.text = text
        t = text.split(";")[0].strip()
        self.defs, self.uses, self.ab, self.c = set(), set(), set(), set()
        self.passes, self.ws, self.target, self.store_data = 0, 1, None, set()
        if not t or t.startswith("."):
            self.op, self.kind, self.ws = "", "dir", 0
            return
        if t.endswith(":"):
            self.op, self.kind, self.ws = t[:-1], "label", 0
            return
        parts = t.split(None, 1)
        op = parts[0]
        for suf in ("_e32", "_e64"):
            if op.endswith(suf):
                op = op[: -len(suf)]
        self.op = op
        rest = parts[1] if len(parts) > 1 else ""
        ops = [o.strip() for o in re.split(r",(?![^\[]*\])", rest)] if rest else []
        mods = ""
        if ops:
            last = ops[-1].split(None, 1)
            ops[-1] = last[0]
            mods = last[1] if len(last) > 1 else ""
        R = [regs_of(o) for o in ops]
        flat = lambda xs: set(r for x in xs for r in x)
        if op in MFMA_PASSES:
            self.kind, self.passes = "mfma", MFMA_PASSES[op]
            self.defs = set(R[0])
            if op.startswith("v_smfmac"):
                self.ab, self.c = flat(R[1:4]), set(R[0])
            else:
                self.ab, self.c = flat(R[1:3]), set(R[3])
            self.uses = self.ab | self.c
        elif op.startswith("v_mfma") or op.startswith("v_smfmac"):
            raise ValueError("unknown mfma " + op)
        elif op.startswith("v_"):
            self.kind = "valu"
            if op.startswith("v_permlane") and "swap" in op:
                self.defs = flat(R[:2]); self.uses = flat(R[:2])
            elif op.startswith("v_cmpx"):
                self.defs = set(R[0]) | {("exec", 0), ("exec", 1)}; self.uses = flat(R[1:])
            elif op in ("v_add_co_u32", "v_sub_co_u32", "v_addc_co_u32", "v_subb_co_u32"):
                self.defs = flat(R[:2]); self.uses = flat(R[2:])
            elif op == "v_nop":
                pass
            else:
                self.defs = set(R[0]); self.uses = flat(R[1:])
                if op.startswith("v_fmac") or op.startswith("v_dot2c") or op.startswith("v_pk_fmac") \
                        or "_dpp" in op or "_sdwa" in op or op == "v_writelane_b32":
                    self.uses |= set(R[0])
        elif op.startswith("buffer_") or op.startswith("global_"):
            self.kind = "vmem"
            lds = " lds" in (" " + mods) or "_lds_" in op
            if op.startswith("buffer_wbl2") or op.startswith("buffer_inv"):
                pass
            elif "load" in op and not lds:
                self.defs = set(R[0]); self.uses = flat(R[1:])
            elif "load" in op:
                self.uses = flat(R) | {("m0", 0)}
            elif "atomic" in op:
                self.uses = flat(R)
                if "sc0" in mods:
                    self.defs = set(R[0])
            else:
                self.uses = flat(R)
                if "x3" in op or "x4" in op:
                    self.store_data = set(R[0] if op.startswith("buffer_") else R[1])
        elif op.startswith("ds_"):
            self.kind = "ds"
            if "read" in op or "permute" in op or "swizzle" in op or "_rtn_" in op:
                self.defs = set(R[0]); self.uses = flat(R[1:])
            else:
                self.uses = flat(R)
        elif op.startswith("s_cbranch") or op == "s_branch":
            self.kind, self.target = "branch", ops[0]
        elif op == "s_nop":
            self.kind, self.ws = "nop", int(ops[0]) + 1
        elif op.startswith("s_load") or op.startswith("s_memtime") or op.startswith("s_memrealtime"):
            self.kind = "smem"; self.defs = set(R[0]); self.uses = flat(R[1:])
        elif op.startswith("s_"):
            self.kind = "salu"
            if op.startswith("s_cmp") or op.startswith("s_bitcmp") or op in (
                    "s_waitcnt", "s_barrier", "s_endpgm", "s_setprio", "s_sleep", "s_setpc_b64"):
                self.uses = flat(R)
            else:
                self.defs = set(R[0]) if R else set(); self.uses = flat(R[1:])
                if "saveexec" in op:
                    self.defs |= {("exec", 0), ("exec", 1)}
        else:
            raise ValueError("cannot classify: " + text)


def _isv(s):
    return {r for r in s if r[0] in "va" and len(r[0]) == 1}


def _iss(s):
    return {r for r in s if r[0] in ("s", "vcc")}


def need(p, c):
    n = 0
    if p.kind == "mfma":
        i = _PI[p.passes]
        if c.kind == "mfma":
            if p.defs & c.ab:
                n = max(n, W_D_TO_AB[i])
            if p.defs & c.c:
                same = p.defs == c.c and p.passes == c.passes
                n = max(n, 0 if same else W_D_TO_C_OVERLAP[i])
            elif p.defs & c.defs:
                n = max(n, 0 if p.passes <= c.passes else W_D_TO_C_OVERLAP[i])
        elif c.kind in ("valu", "vmem", "ds"):
            if p.defs & (c.uses | c.defs):
                n = max(n, W_D_TO_VALU[i])
            if c.kind == "valu" and p.c & c.defs:
                n = max(n, W_C_WAR[i])
    elif p.kind == "valu":
        pv, ps = _isv(p.defs), _iss(p.defs)
        pe = {r for r in p.defs if r[0] == "exec"}
        dot = p.op.startswith("v_dot")
        if c.kind == "mfma":
            if pv & c.uses:
                n = max(n, 3 if dot else 2)
            if pe:
                n = max(n, 4)
        elif c.kind == "valu":
            if p.op in TRANS and c.op not in TRANS and pv & c.uses:
                n = max(n, 1)
            if dot and pv & (c.uses | c.defs) and c.op != p.op:
                n = max(n, 3)
            if (c.op.startswith("v_permlane") or "_dpp" in c.op) and pv & c.uses:
                n = max(n, 2)
            if c.op in ("v_readfirstlane_b32", "v_readlane_b32") and pv & c.uses:
                n = max(n, 1)
            if ps & c.uses:
                n = max(n, 4 if c.op in ("v_readlane_b32", "v_writelane_b32") else 2)
            if c.op == "v_cndmask_b32" and any(r[0] == "vcc" for r in ps):
                n = max(n, 2)
            if "_sdwa" in p.op and pv & (c.uses | c.defs):
                n = max(n, 1)
            if pe and (c.op.startswith("v_permlane") or c.op.startswith("v_read")):
                n = max(n, 4)
            if pe and "_dpp" in c.op:
                n = max(n, 5)
        elif c.kind == "vmem":
            if ps & c.uses:
                n = max(n, 5)
            if dot and pv & c.uses:
                n = max(n, 3)
            if p.op in TRANS and pv & c.uses:
                n = max(n, 1)
        elif c.kind == "ds":
            if dot and pv & c.uses:
                n = max(n, 3)
            if p.op in TRANS and pv & c.uses:
                n = max(n, 1)
        elif c.kind in ("salu", "smem", "branch"):
            if ps & c.uses:
                n = max(n, 1)
    elif p.kind == "vmem":
        if p.store_data and c.kind in ("valu", "mfma", "ds", "vmem") and p.store_data & c.defs:
            n = max(n, 2)
    elif p.kind == "salu":
        if ("m0", 0) in p.defs and c.kind == "vmem" and ("m0", 0) in c.uses:
            n = max(n, 1)
    return n


MAXW = 20


def deficit(hist, c):
    d, dist = 0, 0
    for p in reversed(hist):
        if dist >= MAXW:
            break
        if p.ws == 0:
            continue
        d = max(d, need(p, c) - dist)
        dist += p.ws
    return d


class Asm:
    def __init__(self):
        self.ins = []
        self.vm = 0
        self.lg = 0
        self.nops = 0

    def raw(self, text):
        self.ins.append(Ins(text))

    def __call__(self, text):
        tok = None
        for line in text.strip().split("\n"):
            line = line.strip()
            if not line:
                continue
            i = Ins(line)
            d = deficit(self.ins, i) if i.ws else 0
            while d > 0:
                k = min(d, 16)
                self.ins.append(Ins(f"s_nop {k-1}"))
                self.nops += 1
                d -= k
            self.ins.append(i)
            if i.kind == "vmem" and not i.op.startswith("buffer_inv"):
                self.vm += 1
                tok = ("vm", self.vm)
            elif i.kind == "ds":
                self.lg += 1
                tok = ("lg", self.lg)
        return tok

    def wait(self, *toks):
        vm = [t[1] for t in toks if t and t[0] == "vm"]
        lg = [t[1] for t in toks if t and t[0] == "lg"]
        parts = []
        if vm:
            n = self.vm - max(vm)
            parts.append(f"vmcnt({min(n, 63)})")
        if lg:
            n = self.lg - max(lg)
            parts.append(f"lgkmcnt({min(n, 15)})")
        if parts:
            self("s_waitcnt " + " ".join(parts))

    def label(self, name):
        self.raw(name + ":")

    def check_branches(self):
        pos = {i.op: k for k, i in enumerate(self.ins) if i.kind == "label"}
        bad = []
        for k, b in enumerate(self.ins):
            if b.kind != "branch":
                continue
            hist = list(self.ins[max(0, k - 40): k + 1])
            j, dist = pos[b.target], 0
            while j < len(self.ins) and dist < MAXW:
                c = self.ins[j]
                if c.ws:
                    if deficit(hist, c) > 0:
                        bad.append((b.text, b.target, c.text, deficit(hist, c)))
                    hist.append(c)
                    dist += c.ws
                    if c.op in ("s_branch", "s_endpgm"):
                        break
                j += 1
        return bad

    def text(self):
        bad = self.check_branches()
        if bad:
            raise RuntimeError("hazard across branch: %r" % bad)
        out = []
        for i in self.ins:
            out.append(i.text if i.kind in ("label", "dir") else "    " + i.text)
        return "\n".join(out) + "\n"


def vr(a, n=1):
    return f"v{a}" if n == 1 else f"v[{a}:{a+n-1}]"


def ar(a, n=1):
    return f"a{a}" if n == 1 else f"a[{a}:{a+n-1}]"


def sr(a, n=1):
    return f"s{a}" if n == 1 else f"s[{a}:{a+n-1}]"
```

```python
import struct, sys, math
from asmlib import *

NAME = "sequential_preLN__grouped_kv_mqa__swiglu_ffn__prompt"
Q_OFF, KV_OFF, OF_OFF, HF_OFF = 0, 0x280000, 0x2B0000, 0x530000
ST_OFF, AF_OFF, WGU_OFF, WD_OFF, WS_END = 0x7B0000, 0x7D0000, 0xDD0000, 0x1190000, 0x1370000
KVB = 5632
XB = 2048 * 640 * 2
LOG2E = 1.4426950408889634


def fbits(x):
    return "0x%08x" % struct.unpack("<I", struct.pack("<f", x))[0]


def srd(a, d, base, size):
    a(f"s_mov_b32 s{d}, s{base}\ns_and_b32 s{d+1}, s{base+1}, 0xffff\ns_mov_b32 s{d+2}, {size}\ns_mov_b32 s{d+3}, 0x20000")


def begin(a, name):
    a.raw(".p2align 8")
    a.raw(f".globl {name}")
    a.raw(f".type {name},@function")
    a.label(name)
    a(f"s_cmp_ge_u32 s2, 256\ns_cbranch_scc1 L_{name}_end")


def end(a, name):
    a.label(f"L_{name}_end")
    a("s_endpgm")


def ids(a):
    a("""
    v_lshrrev_b32 v1, 6, v0
    s_and_b32 s33, s2, 7
    s_lshr_b32 s34, s2, 3
    v_readfirstlane_b32 s32, v1
    v_and_b32 v1, 63, v0
    s_lshr_b32 s35, s34, 3
    s_lshl_b32 s33, s33, 2
    s_add_u32 s33, s33, s35
    s_and_b32 s34, s34, 7
    v_and_b32 v2, 15, v1
    v_lshrrev_b32 v3, 4, v1
    """)


def interleave(a, mf, fill, per=2):
    fill = list(fill)
    def one(x):
        x() if callable(x) else a(x)
    for m in mf:
        one(m)
        for _ in range(per):
            if fill:
                one(fill.pop(0))
    for x in fill:
        one(x)


def rows160_addr(a, v0, tmp, permute):
    for i in range(5):
        d = v0 + i
        a(f"v_add_u32 v{tmp}, {64*i}, v1")
        a(f"v_mul_u32_u24 v{tmp+1}, 6554, v{tmp}")
        a(f"v_lshrrev_b32 v{tmp+1}, 16, v{tmp+1}")
        a(f"v_mul_u32_u24 v{tmp+2}, 10, v{tmp+1}")
        a(f"v_sub_u32 v{tmp}, v{tmp}, v{tmp+2}")
        if permute:
            a(f"v_and_b32 v{tmp+2}, 3, v{tmp+1}")
            a(f"v_bfe_u32 v{d}, v{tmp+1}, 2, 2")
            a(f"v_lshl_add_u32 v{tmp+2}, v{d}, 3, v{tmp+2}")
            a(f"v_lshrrev_b32 v{tmp+1}, 4, v{tmp+1}")
            a(f"v_lshl_add_u32 v{tmp+1}, v{tmp+1}, 2, v{tmp+2}")
        a(f"v_mul_u32_u24 v{tmp+1}, 1280, v{tmp+1}")
        a(f"v_lshl_add_u32 v{d}, v{tmp}, 4, v{tmp+1}")
        if 0 < i < 4:
            a(f"v_subrev_u32 v{d}, {1024*i}, v{d}")


def rows160_dma(a, v0, srdn, soff):
    tok = None
    for i in range(4):
        tok = a(f"buffer_load_dwordx4 v{v0+i}, s[{srdn}:{srdn+3}], {soff} offen offset:{1024*i} lds")
    a("s_add_u32 m0, m0, 4096")
    return a(f"buffer_load_dwordx4 v{v0+4}, s[{srdn}:{srdn+3}], {soff} offen lds")


def g1_issue_w(a, va, srdn):
    a("s_mul_i32 s36, s34, 160\ns_mul_i32 s37, s32, 40960\ns_add_u32 s36, s36, s37\ns_mul_i32 s37, s32, 5120")
    toks = []
    for g in range(5):
        a("s_mov_b32 m0, s37")
        toks.append(rows160_dma(a, va, srdn, "s36"))
        if g < 4:
            a(f"s_add_u32 s36, s36, {4*40960}\ns_add_u32 s37, s37, {4*5120}")
    return toks


def g1_tr_addr(a, vt, tmp):
    a(f"""
    v_lshrrev_b32 v{tmp}, 2, v1
    v_mul_u32_u24 v{tmp}, 160, v{tmp}
    v_and_b32 v{vt}, 3, v1
    v_lshl_add_u32 v{vt}, v{vt}, 3, v{tmp}
    v_add_u32 v{vt+1}, 51200, v{vt}
    """)


def g1_main(a, vt, vw, vacc, vx, wtoks, pre_step):
    def reads(s):
        base, off = (vt, s * 5120) if s < 10 else (vt + 1, (s - 10) * 5120)
        b = vw + 20 * (s & 1)
        return [f"ds_read_b64_tr_b16 v[{b+4*t+2*h}:{b+4*t+2*h+1}], v{base} offset:{off + 2560*h + 32*t}"
                for t in range(5) for h in range(2)]
    def sync(g):
        a.wait(wtoks[g])
        a("s_barrier")
    for x in pre_step(0):
        x() if callable(x) else a(x)
    sync(0)
    for r in reads(0):
        a(r)
    for s in range(20):
        a("s_waitcnt lgkmcnt(0)")
        if s < 19 and (s + 1) % 4 == 0:
            sync((s + 1) // 4)
        b = vw + 20 * (s & 1)
        mf = [f"v_mfma_f32_16x16x32_bf16 v[{vacc+4*t}:{vacc+4*t+3}], v[{b+4*t}:{b+4*t+3}], v[{vx+4*s}:{vx+4*s+3}], "
              + ("0" if s == 0 else f"v[{vacc+4*t}:{vacc+4*t+3}]") for t in range(5)]
        fill = (reads(s + 1) + pre_step(s + 1)) if s < 19 else []
        per = max(2, -(-len(fill) // 5))
        interleave(a, mf, fill, per)


def xreduce4(a, v, t):
    a(f"v_mov_b32 v{t}, v{v}\nv_permlane16_swap_b32 v{v}, v{t}\nv_add_f32 v{v}, v{v}, v{t}")
    a(f"v_mov_b32 v{t}, v{v}\nv_permlane32_swap_b32 v{v}, v{t}\nv_add_f32 v{v}, v{v}, v{t}")


def k_qkv(a):
    n = "qkv_kernel"
    begin(a, n)
    a("s_load_dwordx8 s[4:11], s[0:1], 0\ns_load_dwordx2 s[12:13], s[0:1], 88")
    ids(a)
    VX, VW, VACC, VA, VT = 64, 144, 184, 5, 10
    a("""
    s_lshl_b32 s35, s33, 6
    s_lshl_b32 s36, s32, 4
    s_add_u32 s35, s35, s36
    v_add_u32 v4, s35, v2
    v_mul_u32_u24 v4, 1280, v4
    v_lshl_add_u32 v12, v3, 4, v4
    s_waitcnt lgkmcnt(0)
    """)
    srd(a, 16, 4, XB)
    xt = [a(f"buffer_load_dwordx4 v[{VX+4*s}:{VX+4*s+3}], v12, s[16:19], 0 offen offset:{64*s}") for s in range(20)]
    srd(a, 20, 6, 640 * 640 * 2)
    rows160_addr(a, VA, 20, True)
    wt = g1_issue_w(a, VA, 20)
    a("s_bitcmp1_b32 s34, 1\ns_cselect_b32 s14, s10, s8\ns_cselect_b32 s15, s11, s9")
    srd(a, 24, 14, 25600)
    srd(a, 28, 12, WS_END)
    a(f"s_cmp_ge_u32 s34, 4\ns_cbranch_scc1 L_qkv_nokvload")
    a("s_mul_i32 s36, s32, 7168\ns_add_u32 m0, s36, 102400\nv_lshlrev_b32 v13, 4, v1")
    vm0 = a.vm
    for i in range(4):
        a(f"buffer_load_dwordx4 v13, s[24:27], s36 offen offset:{1024*i} lds")
    a("s_add_u32 s36, s36, 4096\ns_add_u32 m0, m0, 4096")
    for i in range(3):
        a(f"buffer_load_dwordx4 v13, s[24:27], s36 offen offset:{1024*i} lds")
    a.label("L_qkv_nokvload")
    a.vm = vm0
    g1_tr_addr(a, VT, 20)
    a("v_mov_b32 v14, 0\nv_mov_b32 v15, 0\nv_mov_b32 v16, 0\nv_mov_b32 v17, 0\nv_mov_b32 v18, 0x3f803f80")
    for s in range(20):
        if s % 4 == 0:
            a.wait(xt[s + 3])
        for r in range(4):
            x = VX + 4 * s + r
            a(f"v_dot2c_f32_bf16 v{14 + (r & 1)}, v{x}, v18\nv_dot2c_f32_bf16 v{16 + (r & 1)}, v{x}, v{x}")
    a("v_add_f32 v14, v14, v15\nv_add_f32 v16, v16, v17")
    xreduce4(a, 14, 15)
    xreduce4(a, 16, 17)
    a(f"""
    v_mul_f32 v14, {fbits(1/640)}, v14
    v_mul_f32 v16, {fbits(1/640)}, v16
    v_fma_f32 v16, -v14, v14, v16
    v_max_f32 v16, 0, v16
    v_add_f32 v16, {fbits(1e-5)}, v16
    v_rsq_f32 v16, v16
    v_mul_f32 v14, -v14, v16
    v_mov_b32 v17, v16
    v_mov_b32 v15, v14
    """.replace("v_mul_f32 v14, -v14, v16", "v_mul_f32_e64 v14, -v14, v16"))

    def norm(s):
        o = []
        for r in range(4):
            x, t = VX + 4 * s + r, 20 + 2 * r
            o += [f"v_lshlrev_b32 v{t}, 16, v{x}", f"v_and_b32 v{t+1}, 0xffff0000, v{x}"]
        for r in range(4):
            t = 20 + 2 * r
            o += [f"v_pk_fma_f32 v[{t}:{t+1}], v[{t}:{t+1}], v[16:17], v[14:15]"]
        for r in range(4):
            x, t = VX + 4 * s + r, 20 + 2 * r
            o += [f"v_cvt_pk_bf16_f32 v{x}, v{t}, v{t+1}"]
        return o
    g1_main(a, VT, VW, VACC, VX, wt, norm)
    a(f"s_mov_b32 s38, {fbits(LOG2E / math.sqrt(20))}\ns_mul_i32 s36, s34, 160\nv_lshl_add_u32 v12, v3, 3, v4")
    for t in range(5):
        c = VACC + 4 * t
        for r in range(4):
            a(f"v_mul_f32 v{c+r}, s38, v{c+r}")
        a(f"v_cvt_pk_bf16_f32 v{c}, v{c}, v{c+1}\nv_cvt_pk_bf16_f32 v{c+1}, v{c+2}, v{c+3}")
        a(f"buffer_store_dwordx2 v[{c}:{c+1}], v12, s[28:31], s36 offen offset:{32*t}")
    a(f"s_cmp_ge_u32 s34, 4\ns_cbranch_scc1 L_{n}_end")
    a("s_waitcnt vmcnt(5)\ns_barrier")
    a("""
    v_bfe_u32 v20, v1, 2, 2
    v_lshl_add_u32 v20, v3, 3, v20
    v_mul_u32_u24 v20, 40, v20
    v_and_b32 v21, 3, v1
    v_lshlrev_b32 v21, 3, v21
    s_bitcmp1_b32 s34, 0
    s_cselect_b32 s36, 0, -1
    s_cselect_b32 s37, 32, 0
    v_and_b32 v21, s36, v21
    s_add_u32 s37, s37, 102400
    v_add3_u32 v20, v20, v21, s37
    """)
    a(f"""
    s_mul_i32 s36, s33, {KVB}
    s_add_u32 s36, s36, {KV_OFF}
    """)
    VK = 144
    for half in range(2):
        rd = [f"ds_read_b64_tr_b16 v[{VK+4*s+2*h}:{VK+4*s+2*h+1}], v20 offset:{(10*half+s)*1280 + 160*h}"
              for s in range(10) for h in range(2)]
        for r in rd:
            a(r)
        a("s_waitcnt lgkmcnt(0)")
        a(f"s_bitcmp1_b32 s34, 1\ns_cbranch_scc1 L_qkv_v{half}")
        for s in range(10):
            c = 204 + 4 * (s & 1)
            cc = "0" if (half == 0 and s < 2) else f"v[{c}:{c+3}]"
            x = VX + 4 * (10 * half + s)
            a(f"v_mfma_f32_16x16x32_bf16 v[{c}:{c+3}], v[{VK+4*s}:{VK+4*s+3}], v[{x}:{x+3}], {cc}")
        a(f"s_branch L_qkv_j{half}")
        a.label(f"L_qkv_v{half}")
        for s in range(10):
            c = 204 + 4 * (s & 1)
            cc = "0" if (half == 0 and s < 2) else f"v[{c}:{c+3}]"
            x = VX + 4 * (10 * half + s)
            a(f"v_mfma_f32_16x16x32_bf16 v[{c}:{c+3}], v[{x}:{x+3}], v[{VK+4*s}:{VK+4*s+3}], {cc}")
        a.label(f"L_qkv_j{half}")
    a("s_nop 7")
    for r in range(4):
        a(f"v_add_f32 v{204+r}, v{204+r}, v{208+r}")
    a("v_cvt_pk_bf16_f32 v204, v204, v205\nv_cvt_pk_bf16_f32 v205, v206, v207")
    a("v_lshrrev_b32 v22, 1, v3\nv_and_b32 v23, 1, v3\ns_lshl_b32 s37, s32, 4\nv_add_u32 v24, s37, v2")
    a("s_cmp_eq_u32 s34, 1\ns_cbranch_scc1 L_qkv_khi\ns_cmp_eq_u32 s34, 0\ns_cbranch_scc0 L_qkv_vst")
    a("""
    v_lshrrev_b32 v25, 5, v24
    v_and_b32 v24, 31, v24
    v_lshl_add_u32 v24, v22, 5, v24
    v_lshl_add_u32 v24, v25, 6, v24
    v_lshlrev_b32 v24, 4, v24
    v_lshl_add_u32 v24, v23, 3, v24
    buffer_store_dwordx2 v[204:205], v24, s[28:31], s36 offen
    s_endpgm
    """)
    a.label("L_qkv_khi")
    a("""
    v_lshlrev_b32 v24, 3, v24
    s_mov_b64 exec, 0xffff
    buffer_store_dwordx2 v[204:205], v24, s[28:31], s36 offen offset:2048
    s_endpgm
    """)
    a.label("L_qkv_vst")
    a("""
    s_mul_i32 s37, s32, 768
    v_mul_u32_u24 v24, 384, v22
    v_lshl_add_u32 v24, v23, 3, v24
    v_lshl_add_u32 v24, v2, 4, v24
    v_add_u32 v24, s37, v24
    s_cmp_eq_u32 s34, 3
    s_cbranch_scc1 L_qkv_vhi
    buffer_store_dwordx2 v[204:205], v24, s[28:31], s36 offen offset:2560
    s_endpgm
    """)
    a.label("L_qkv_vhi")
    a("""
    v_cmp_eq_u32 vcc, 4, v2
    v_cndmask_b32 v204, v204, v18, vcc
    v_cndmask_b32 v205, v205, v18, vcc
    s_mov_b32 exec_lo, 0x001f001f
    s_mov_b32 exec_hi, 0x001f001f
    buffer_store_dwordx2 v[204:205], v24, s[28:31], s36 offen offset:2816
    """)
    end(a, n)
    return dict(name=n, vgpr=256, acc=256, lds=131072)


SA, SB = 32, 64
AO, AQ, AK, AV = 0, 64, 88, 108
VIDX = 12


def att_half(a, sc, sn, tile, buf, slots, cz="0"):
    nt, nb = (tile + 1) & 3, buf ^ (1 if tile == 3 else 0)
    pt, pb = (tile - 1) & 3, buf ^ (1 if tile == 0 else 0)
    k, q = AK + 10 * nb, AQ + 6 * nt
    slots = list(slots) + [None] * 7
    def E(lo, hi):
        for i in range(lo, hi):
            a(f"v_exp_f32 v{sc+i}, v{sc+i}")
    def M(t):
        a(t)
        x = slots.pop(0)
        if x:
            a(x)
    def PV(t, b, j, s):
        o, v = AO + 16 * t, AV + 16 * b + 4 * j
        return f"v_smfmac_f32_32x32x32_bf16 a[{o}:{o+15}], a[{v}:{v+3}], v[{s+8*j}:{s+8*j+7}], v{VIDX}"
    E(0, 2)
    M(PV(pt, pb, 3, sn))
    E(2, 5)
    M(f"v_mfma_f32_32x32x4bf16_1k v[{sn}:{sn+31}], a[{k+8}:{k+9}], a[{q+4}:{q+5}], {cz}")
    E(5, 13)
    M(PV(tile, buf, 0, sc))
    E(13, 18)
    M(PV(tile, buf, 1, sc))
    E(18, 21)
    M(f"v_mfma_f32_32x32x16_bf16 v[{sn}:{sn+15}], a[{k}:{k+3}], a[{q}:{q+3}], v[{sn}:{sn+15}]")
    E(21, 24)
    M(f"v_mfma_f32_32x32x16_bf16 v[{sn+16}:{sn+31}], a[{k+4}:{k+7}], a[{q}:{q+3}], v[{sn+16}:{sn+31}]")
    E(24, 28)
    M(PV(tile, buf, 2, sc))
    E(28, 32)


def kloads(buf, so):
    k = AK + 10 * buf
    return [f"buffer_load_dwordx4 a[{k}:{k+3}], v4, s[28:31], {so} offen",
            f"buffer_load_dwordx4 a[{k+4}:{k+7}], v4, s[28:31], {so} offen offset:1024",
            f"buffer_load_dwordx2 a[{k+8}:{k+9}], v5, s[28:31], {so} offen offset:2048"]


def vloads(buf, so):
    v = AV + 16 * buf
    return [f"buffer_load_dwordx4 a[{v+4*j}:{v+4*j+3}], v6, s[28:31], {so} offen offset:{768*j}" for j in range(4)]


def att_block(a, buf, cz="0"):
    att_half(a, SA, SB, 0, buf, vloads(buf ^ 1, "s41") + [f"s_add_u32 s41, s41, {KVB}"], cz)
    att_half(a, SB, SA, 1, buf, [], cz)
    att_half(a, SA, SB, 2, buf, [], cz)
    att_half(a, SB, SA, 3, buf, ["s_waitcnt vmcnt(4)"] + kloads(buf, "s40")
             + [f"s_add_u32 s40, s40, {KVB}", "s_sub_u32 s42, s42, 1" if buf else None, "s_waitcnt vmcnt(3)"], cz)


def preformat_issue(a):
    a("s_lshl_b32 s44, s2, 2\ns_add_u32 s44, s44, s32\ns_mul_i32 s45, s32, 6144")
    a("s_cmp_ge_u32 s44, 640\ns_cbranch_scc1 L_pf_down")
    a("s_lshr_b32 s46, s44, 5\ns_and_b32 s47, s44, 31")
    for i in range(3):
        a(f"""
        v_add_u32 v100, {64*i}, v1
        v_mul_u32_u24 v101, 10923, v100
        v_lshrrev_b32 v101, 16, v101
        v_mul_u32_u24 v102, 6, v101
        v_sub_u32 v100, v100, v102
        v_mul_u32_u24 v101, 3072, v101
        v_lshl_add_u32 v{104+i}, v100, 4, v101
        """)
        if i:
            a(f"v_subrev_u32 v{104+i}, {1024*i}, v{104+i}")
    a("s_mul_i32 s48, s46, 98304\ns_mul_i32 s49, s47, 96\ns_add_u32 s48, s48, s49\ns_mov_b32 m0, s45")
    srd(a, 16, 4, 640 * 1536 * 2)
    srd(a, 20, 6, 640 * 1536 * 2)
    for i in range(3):
        a(f"buffer_load_dwordx4 v{104+i}, s[16:19], s48 offen offset:{1024*i} lds")
    a("s_add_u32 m0, m0, 3072")
    for i in range(3):
        a(f"buffer_load_dwordx4 v{104+i}, s[20:23], s48 offen offset:{1024*i} lds")
    a("s_branch L_pf_issued")
    a.label("L_pf_down")
    a("s_sub_u32 s46, s44, 640\ns_and_b32 s47, s46, 7\ns_lshr_b32 s46, s46, 3")
    rows160_addr(a, 104, 100, False)
    a("s_mul_i32 s48, s46, 40960\ns_mul_i32 s49, s47, 160\ns_add_u32 s48, s48, s49\ns_mov_b32 m0, s45")
    srd(a, 16, 8, 1536 * 640 * 2)
    rows160_dma(a, 104, 16, "s48")
    a.label("L_pf_issued")


def preformat_finish(a):
    R = 100
    a("v_bfe_u32 v96, v1, 2, 2\nv_lshl_add_u32 v96, v3, 3, v96\nv_and_b32 v97, 3, v1\nv_lshlrev_b32 v99, 4, v1")
    a("s_cmp_ge_u32 s44, 640\ns_cbranch_scc1 L_pf2_down")
    a("""
    v_mul_u32_u24 v96, 96, v96
    v_add_u32 v96, s45, v96
    v_lshrrev_b32 v98, 1, v97
    v_mul_u32_u24 v98, 3056, v98
    v_lshl_add_u32 v96, v97, 3, v96
    v_add_u32 v98, v98, v96
    """)
    for ww in range(2):
        for t in range(3):
            for h in range(2):
                d = R + 12 * ww + 4 * t + 2 * h
                base, off = (96, 3072 * t) if t < 2 else (98, 32)
                a(f"ds_read_b64_tr_b16 v[{d}:{d+1}], v{base} offset:{off + 48*ww + 384*h}")
    a(f"s_mul_i32 s48, s47, {2*61440}\ns_mul_i32 s49, s46, 3072\ns_add_u32 s48, s48, s49\ns_add_u32 s48, s48, {WGU_OFF}\ns_add_u32 s49, s48, 61440")
    a("s_waitcnt lgkmcnt(0)")
    for ww in range(2):
        for t in range(3):
            d = R + 12 * ww + 4 * t
            a(f"buffer_store_dwordx4 v[{d}:{d+3}], v99, s[28:31], s{48+ww} offen offset:{1024*t}")
    a("s_branch L_pf2_done")
    a.label("L_pf2_down")
    a("v_mul_u32_u24 v96, 160, v96\nv_add_u32 v96, s45, v96\nv_lshl_add_u32 v96, v97, 3, v96")
    for t in range(5):
        for h in range(2):
            d = R + 4 * t + 2 * h
            a(f"ds_read_b64_tr_b16 v[{d}:{d+1}], v96 offset:{32*t + 640*h}")
    a(f"s_mul_i32 s48, s47, {48*5120}\ns_mul_i32 s49, s46, 5120\ns_add_u32 s48, s48, s49\ns_add_u32 s48, s48, {WD_OFF}\ns_add_u32 s49, s48, 4096")
    a("s_waitcnt lgkmcnt(0)")
    for t in range(4):
        a(f"buffer_store_dwordx4 v[{R+4*t}:{R+4*t+3}], v99, s[28:31], s48 offen offset:{1024*t}")
    a(f"buffer_store_dwordx4 v[{R+16}:{R+19}], v99, s[28:31], s49 offen")
    a.label("L_pf2_done")


def k_attn(a):
    n = "attn_kernel"
    begin(a, n)
    a("s_load_dwordx4 s[4:7], s[0:1], 48\ns_load_dwordx2 s[8:9], s[0:1], 64\ns_load_dwordx2 s[12:13], s[0:1], 88")
    ids(a)
    a(f"""
    v_lshlrev_b32 v4, 4, v1
    v_lshlrev_b32 v5, 3, v1
    v_and_b32 v7, 31, v1
    v_lshrrev_b32 v8, 5, v1
    v_min_u32 v6, 20, v7
    v_lshlrev_b32 v6, 4, v6
    v_mul_u32_u24 v9, 384, v8
    v_add_u32 v6, v6, v9
    v_add_u32 v6, 2560, v6
    s_and_b32 s36, s32, 1
    s_lshr_b32 s37, s32, 1
    s_lshl_b32 s38, s33, 6
    s_lshl_b32 s39, s37, 5
    s_add_u32 s38, s38, s39
    v_add_u32 v10, s38, v7
    v_mul_u32_u24 v10, 1280, v10
    v_lshl_add_u32 v9, v8, 4, v10
    s_mul_i32 s38, s34, 160
    s_mul_i32 s43, s36, {16*KVB}
    s_add_u32 s43, s43, {KV_OFF}
    v_mov_b32 v{VIDX}, 0xdddddddd
    s_mov_b32 s50, 0
    s_waitcnt lgkmcnt(0)
    """)
    srd(a, 28, 12, WS_END)
    for h in range(4):
        q = AQ + 6 * h
        a(f"buffer_load_dwordx4 a[{q}:{q+3}], v9, s[28:31], s38 offen offset:{40*h}")
        a(f"buffer_load_dwordx2 a[{q+4}:{q+5}], v10, s[28:31], s38 offen offset:{40*h+32}")
    preformat_issue(a)
    a(f"s_add_u32 s41, s43, {KVB}\ns_add_u32 s40, s43, {2*KVB}")
    for x in kloads(0, "s43") + vloads(0, "s43") + kloads(1, "s41"):
        a(x)
    for i in range(64):
        a(f"v_accvgpr_write_b32 a{AO+i}, 0")
    for i in range(4):
        a(f"v_accvgpr_write_b32 a{AV+28+i}, 0")
    for i in range(8):
        a(f"v_mov_b32 v{SB+24+i}, 0")
    a("s_waitcnt vmcnt(3)")
    a(f"v_mfma_f32_32x32x4bf16_1k v[{SA}:{SA+31}], a[{AK+8}:{AK+9}], a[{AQ+4}:{AQ+5}], 0")
    preformat_finish(a)
    a(f"v_mfma_f32_32x32x16_bf16 v[{SA}:{SA+15}], a[{AK}:{AK+3}], a[{AQ}:{AQ+3}], v[{SA}:{SA+15}]")
    a(f"v_mfma_f32_32x32x16_bf16 v[{SA+16}:{SA+31}], a[{AK+4}:{AK+7}], a[{AQ}:{AQ+3}], v[{SA+16}:{SA+31}]")
    a("s_mov_b32 s42, 8\ns_nop 7\ns_nop 3")
    a.raw(".p2align 6")
    a.label("L_att_loop")
    att_block(a, 0)
    att_block(a, 1)
    a("s_cmp_lg_u32 s42, 0\ns_cbranch_scc1 L_att_loop")
    a(f"v_smfmac_f32_32x32x32_bf16 a[{AO+48}:{AO+63}], a[{AV+28}:{AV+31}], v[{SB+24}:{SB+31}], v{VIDX}")
    a.label("L_att_reduce")
    a("s_waitcnt vmcnt(0)\ns_barrier")
    a("s_lshl_b32 s38, s32, 13\nv_add_u32 v14, s38, v4\ns_xor_b32 s38, s38, 8192\nv_add_u32 v15, s38, v4")
    a("s_cmp_eq_u32 s36, 0\ns_cbranch_scc0 L_att_x1")
    for br in range(2):
        send, keep = (2, 0) if br == 0 else (0, 2)
        for t in range(2):
            for j in range(4):
                o = AO + 16 * (send + t) + 4 * j
                a(f"ds_write_b128 v14, a[{o}:{o+3}] offset:{4096*t + 1024*j}")
        for t in range(2):
            for r in range(13):
                a(f"v_accvgpr_read_b32 v{SA+16*t+r}, a{AO+16*(keep+t)+r}")
        if br == 0:
            a("s_branch L_att_x2")
            a.label("L_att_x1")
    a.label("L_att_x2")
    a("s_waitcnt lgkmcnt(0)\ns_barrier")
    for t in range(2):
        for j in range(4):
            a(f"ds_read_b128 v[{SB+16*t+4*j}:{SB+16*t+4*j+3}], v15 offset:{4096*t + 1024*j}")
    a(f"""
    s_lshl_b32 s38, s33, 2
    s_lshl_b32 s39, s37, 1
    s_add_u32 s38, s38, s39
    s_mul_i32 s38, s38, 20480
    s_mul_i32 s39, s34, 2560
    s_add_u32 s38, s38, s39
    s_mul_i32 s39, s36, 1280
    s_add_u32 s38, s38, s39
    s_add_u32 s38, s38, {OF_OFF}
    v_lshrrev_b32 v16, 4, v7
    v_mul_u32_u24 v16, 20480, v16
    v_lshl_add_u32 v16, v2, 4, v16
    v_mul_u32_u24 v17, 248, v8
    v_add_u32 v17, v17, v16
    v_add_u32 v17, 520, v17
    v_lshl_add_u32 v16, v8, 3, v16
    s_waitcnt lgkmcnt(0)
    """)
    for t in range(2):
        for r in range(13):
            a(f"v_add_f32 v{SA+16*t+r}, v{SA+16*t+r}, v{SB+16*t+r}")
    for t in range(2):
        b = SA + 16 * t
        a(f"v_rcp_f32 v{b+13}, v{b+12}")
        for r in range(12):
            a(f"v_mul_f32 v{b+r}, v{b+r}, v{b+13}")
        for j in range(6):
            a(f"v_cvt_pk_bf16_f32 v{b+j}, v{b+2*j}, v{b+2*j+1}")
        for j in range(2):
            a(f"buffer_store_dwordx2 v[{b+2*j}:{b+2*j+1}], v{16+t}, s[28:31], s38 offen offset:{256*j}")
    a("s_mov_b32 exec_hi, 0")
    for t in range(2):
        b = SA + 16 * t
        a(f"buffer_store_dwordx2 v[{b+4}:{b+5}], v{16+t}, s[28:31], s38 offen offset:512")
    end(a, n)
    return dict(name=n, vgpr=128 + 144, acc=128, lds=98304)


def k_wo(a):
    n = "wo_kernel"
    begin(a, n)
    a("s_load_dwordx2 s[4:5], s[0:1], 0\ns_load_dwordx2 s[6:7], s[0:1], 32\ns_load_dwordx2 s[12:13], s[0:1], 88")
    ids(a)
    VX, VW, VACC, VA, VT, VR = 64, 144, 184, 5, 10, 204
    rows160_addr(a, VA, 20, True)
    a(f"""
    s_lshl_b32 s35, s33, 2
    s_add_u32 s35, s35, s32
    s_mul_i32 s39, s35, 20480
    s_add_u32 s38, s39, {OF_OFF}
    s_lshl_b32 s35, s35, 4
    v_add_u32 v4, s35, v2
    v_mul_u32_u24 v12, 1280, v4
    v_lshl_add_u32 v12, v3, 3, v12
    v_lshlrev_b32 v13, 4, v1
    s_waitcnt lgkmcnt(0)
    """)
    srd(a, 28, 12, WS_END)
    srd(a, 20, 6, 640 * 640 * 2)
    srd(a, 16, 4, XB)
    a("s_mul_i32 s36, s34, 160\ns_mul_i32 s37, s32, 40960\ns_add_u32 s36, s36, s37\ns_mul_i32 s37, s32, 5120")
    wt = []
    for g in range(5):
        for s in range(4):
            a(f"buffer_load_dwordx4 v[{VX+16*g+4*s}:{VX+16*g+4*s+3}], v13, s[28:31], s38 offen offset:{1024*s}")
        a("s_mov_b32 m0, s37\ns_add_u32 s38, s38, 4096")
        wt.append(rows160_dma(a, VA, 20, "s36"))
        if g < 4:
            a(f"s_add_u32 s36, s36, {4*40960}\ns_add_u32 s37, s37, {4*5120}")
    a("s_mul_i32 s36, s34, 160")
    for t in range(5):
        rt = a(f"buffer_load_dwordx2 v[{VR+2*t}:{VR+2*t+1}], v12, s[16:19], s36 offen offset:{32*t}")
    g1_tr_addr(a, VT, 20)
    g1_main(a, VT, VW, VACC, VX, wt, lambda s: [])
    a(f"""
    s_mul_i32 s36, s34, 2560
    s_add_u32 s36, s36, s39
    s_add_u32 s36, s36, {HF_OFF}
    v_lshrrev_b32 v20, 1, v3
    v_and_b32 v21, 1, v3
    v_lshlrev_b32 v20, 8, v20
    v_lshl_add_u32 v20, v2, 4, v20
    v_lshl_add_u32 v20, v21, 3, v20
    v_mov_b32 v14, 0
    v_mov_b32 v15, 0
    v_mov_b32 v18, 0x3f803f80
    """)
    a.wait(rt)
    for t in range(5):
        c = VACC + 4 * t
        for r in range(2):
            x = VR + 2 * t + r
            a(f"v_lshlrev_b32 v22, 16, v{x}\nv_and_b32 v23, 0xffff0000, v{x}")
            a(f"v_add_f32 v{c+2*r}, v{c+2*r}, v22\nv_add_f32 v{c+2*r+1}, v{c+2*r+1}, v23")
        a(f"v_cvt_pk_bf16_f32 v{c}, v{c}, v{c+1}\nv_cvt_pk_bf16_f32 v{c+1}, v{c+2}, v{c+3}")
        a(f"buffer_store_dwordx2 v[{c}:{c+1}], v20, s[28:31], s36 offen offset:{512*t}")
        for r in range(2):
            a(f"v_dot2c_f32_bf16 v14, v{c+r}, v18\nv_dot2c_f32_bf16 v15, v{c+r}, v{c+r}")
    xreduce4(a, 14, 22)
    xreduce4(a, 15, 23)
    a(f"""
    v_lshlrev_b32 v4, 6, v4
    s_lshl_b32 s36, s34, 3
    s_add_u32 s36, s36, {ST_OFF}
    s_mov_b64 exec, 0xffff
    buffer_store_dwordx2 v[14:15], v4, s[28:31], s36 offen
    """)
    end(a, n)
    return dict(name=n, vgpr=256, acc=256, lds=102400)


def k_gu(a):
    n = "gu_kernel"
    begin(a, n)
    a("s_load_dwordx2 s[12:13], s[0:1], 88")
    ids(a)
    a(f"""
    s_lshr_b32 s33, s33, 1
    s_lshr_b32 s34, s2, 3
    s_and_b32 s34, s34, 15
    v_lshlrev_b32 v4, 4, v1
    v_add_u32 v5, 65536, v4
    v_add_u32 v6, 131072, v4
    s_lshl_b32 s35, s33, 13
    s_add_u32 s35, s35, {ST_OFF}
    v_lshlrev_b32 v7, 6, v1
    s_mul_i32 s36, s33, {8*20480}
    s_mul_i32 s37, s32, 5120
    s_add_u32 s36, s36, s37
    s_add_u32 s36, s36, {HF_OFF}
    s_lshl_b32 s38, s34, 2
    s_add_u32 s38, s38, s32
    s_mul_i32 s39, s38, 61440
    s_add_u32 s39, s39, {WGU_OFF}
    s_waitcnt lgkmcnt(0)
    """)
    srd(a, 28, 12, WS_END)
    VS = 128
    a("s_add_u32 s40, s35, 4096")
    for j in range(2):
        for i in range(4):
            st = a(f"buffer_load_dwordx4 v[{VS+16*j+4*i}:{VS+16*j+4*i+3}], v7, s[28:31], s{35 if j == 0 else 40} offen offset:{16*i}")
    at = []
    def dma_tile():
        a("s_mov_b32 m0, s37\ns_add_u32 s40, s36, 4096")
        for i in range(4):
            a(f"buffer_load_dwordx4 v4, s[28:31], s36 offen offset:{1024*i} lds")
        a("s_add_u32 m0, m0, 4096\ns_add_u32 s36, s36, 20480\ns_add_u32 s37, s37, 20480")
        at.append(a("buffer_load_dwordx4 v4, s[28:31], s40 offen lds"))
    dma_tile()
    bt = []
    for f in range(60):
        bt.append(a(f"buffer_load_dwordx4 a[{4*f}:{4*f+3}], v4, s[28:31], s39 offen offset:{1024*(f&3)}"))
        if f & 3 == 3:
            a("s_add_u32 s39, s39, 4096")
        if f == 39:
            a.wait(st)
            VMEAN, VRSTD = 96, 104
            for j in range(2):
                b = VS + 16 * j
                for i in range(1, 8):
                    a(f"v_add_f32 v{b}, v{b}, v{b+2*i}\nv_add_f32 v{b+1}, v{b+1}, v{b+2*i+1}")
                m, r = VMEAN + 4 * j, VRSTD + 4 * j
                a(f"""
                v_mul_f32 v{m}, {fbits(1/640)}, v{b}
                v_mul_f32 v{r}, {fbits(1/640)}, v{b+1}
                v_fma_f32 v{r}, -v{m}, v{m}, v{r}
                v_max_f32 v{r}, 0, v{r}
                v_add_f32 v{r}, {fbits(1e-5)}, v{r}
                v_rsq_f32 v{r}, v{r}
                """)
                for x in (m, r):
                    a(f"v_mov_b32 v{x+2}, v{x}\nv_permlane32_swap_b32 v{x}, v{x+2}")
                    a(f"v_mov_b32 v{x+1}, v{x}\nv_mov_b32 v{x+3}, v{x+2}")
                    a(f"v_permlane16_swap_b32 v{x}, v{x+1}\nv_permlane16_swap_b32 v{x+2}, v{x+3}")
    for _ in range(7):
        dma_tile()
    a(f"""
    s_mul_i32 s41, s33, {8*49152}
    s_mul_i32 s42, s38, 768
    s_add_u32 s41, s41, s42
    s_add_u32 s41, s41, {AF_OFF}
    v_lshrrev_b32 v8, 1, v3
    v_and_b32 v9, 1, v3
    v_lshlrev_b32 v10, 4, v2
    v_lshl_add_u32 v10, v9, 3, v10
    v_mul_u32_u24 v11, 49152, v8
    v_add_u32 v11, v11, v10
    v_lshl_add_u32 v10, v8, 8, v10
    v_mov_b32 v12, 0x3f803f80
    v_mov_b32 v13, v12
    v_mov_b32 v14, v12
    v_mov_b32 v15, v12
    s_mov_b32 s43, {fbits(-LOG2E)}
    """)
    VF, NF, VC, VCS, VT = 16, 6, 40, 64, 76

    def rd(i):
        mt, s = divmod(i, 20)
        off = mt * 20480 + s * 1024
        d = VF + 4 * (i % NF)
        return f"ds_read_b128 v[{d}:{d+3}], v{4 + (off >> 16)} offset:{off & 0xffff}"

    def act(g, u, t, c1, c2):
        return [f"v_mul_f32 v{t}, v{g}, v{c1}", f"v_mul_f32 v{g}, v{g}, v{u}", f"v_exp_f32 v{t}, v{t}",
                f"v_mul_f32 v{g}, v{g}, v{c2}", f"v_add_f32 v{t}, 1.0, v{t}", f"v_rcp_f32 v{t}, v{t}",
                f"v_mul_f32 v{g}, v{g}, v{t}"]

    def weave(lists):
        o = []
        for i in range(max(map(len, lists))):
            o += [l[i] for l in lists if i < len(l)]
        return o

    VMX = 112

    def epilogue(mt):
        c = VC + 12 * (mt & 1)
        m, r = 96 + mt, 104 + mt
        c1, c2 = VT + 4, VT + 5
        o = [f"v_mul_f32 v{c1}, s43, v{r}", f"v_mul_f32 v{c2}, v{r}, v{r}"]
        o += [f"v_fma_f32 v{c+i}, -v{m}, v{VCS+i}, v{c+i}" for i in range(8)]
        dst = VMX if mt % 2 == 0 else c + 8
        o += [f"v_fma_f32 v{c+8+i}, -v{m}, v{VCS+8+i}, v{c+8+i}" for i in range(4)]
        o += [f"v_mul_f32 v{dst+i}, v{c+8+i}, v{r}" for i in range(4)]
        o += weave([act(c + i, c + 4 + i, VT + i, c1, c2) for i in range(4)])
        o += [f"v_cvt_pk_bf16_f32 v{c+4}, v{c}, v{c+1}", f"v_cvt_pk_bf16_f32 v{c+5}, v{c+2}, v{c+3}",
              f"buffer_store_dwordx2 v[{c+4}:{c+5}], v10, s[28:31], s41 offen"]
        if mt % 2 == 1:
            o += [f"v_permlane32_swap_b32 v{VMX+i}, v{c+8+i}" for i in range(4)]
            def act2(g, u, t):
                return [f"v_mul_f32 v{t}, s43, v{g}", f"v_mul_f32 v{g}, v{g}, v{u}", f"v_exp_f32 v{t}, v{t}",
                        f"v_add_f32 v{t}, 1.0, v{t}", f"v_rcp_f32 v{t}, v{t}", f"v_mul_f32 v{g}, v{g}, v{t}"]
            o += weave([act2(VMX + i, c + 8 + i, VT + i) for i in range(4)])
            o += [f"v_cvt_pk_bf16_f32 v{c+6}, v{VMX}, v{VMX+1}", f"v_cvt_pk_bf16_f32 v{c+7}, v{VMX+2}, v{VMX+3}",
                  "s_sub_u32 s42, s41, 49152",
                  f"buffer_store_dwordx2 v[{c+6}:{c+7}], v11, s[28:31], s42 offen offset:512"]
        o += ["s_add_u32 s41, s41, 49152"]
        return o

    rtok = {}
    def do_rd(i):
        if i % 20 == 0:
            a.wait(at[i // 20])
            a("s_barrier")
        rtok[i] = a(rd(i))
    AHEAD = NF - 1
    for i in range(AHEAD):
        do_rd(i)
    for mt in range(8):
        c = VC + 12 * (mt & 1)
        ep = epilogue(mt - 1) if mt else []
        for s in range(20):
            i = mt * 20 + s
            f = VF + 4 * (i % NF)
            a.wait(rtok[i], bt[3 * s + 2] if mt == 0 else None)
            for t in range(3):
                w = 4 * (3 * s + t)
                cc = "0" if s == 0 else f"v[{c+4*t}:{c+4*t+3}]"
                a(f"v_mfma_f32_16x16x32_bf16 v[{c+4*t}:{c+4*t+3}], a[{w}:{w+3}], v[{f}:{f+3}], {cc}")
                if mt == 0:
                    cc = "0" if s == 0 else f"v[{VCS+4*t}:{VCS+4*t+3}]"
                    a(f"v_mfma_f32_16x16x32_bf16 v[{VCS+4*t}:{VCS+4*t+3}], a[{w}:{w+3}], v[12:15], {cc}")
                budget = 2
                if t == 0 and i + AHEAD < 160:
                    do_rd(i + AHEAD)
                    budget = 1
                if s >= 2:
                    while ep and budget > 0:
                        cost = 2 if ep[0].split()[0] in TRANS else 1
                        if cost > budget and budget < 2:
                            break
                        a(ep.pop(0))
                        budget -= cost
        for x in ep:
            a(x)
    for x in epilogue(7):
        a(x)
    end(a, n)
    return dict(name=n, vgpr=512, acc=256, lds=163840)


def k_down(a):
    n = "down_kernel"
    begin(a, n)
    a("s_load_dwordx2 s[4:5], s[0:1], 72\ns_load_dwordx2 s[12:13], s[0:1], 88")
    ids(a)
    VA_, VC, VH = 64, 16, 56
    a(f"""
    v_lshlrev_b32 v4, 4, v1
    s_lshl_b32 s35, s34, 2
    s_add_u32 s35, s35, s32
    s_mul_i32 s39, s35, 61440
    s_add_u32 s39, s39, {WD_OFF}
    s_mul_i32 s36, s33, {4*49152}
    s_mul_i32 s37, s32, 12288
    s_add_u32 s36, s36, s37
    s_add_u32 s36, s36, {AF_OFF}
    s_waitcnt lgkmcnt(0)
    """)
    srd(a, 28, 12, WS_END)
    srd(a, 16, 4, XB)
    at, bt = {}, []
    def a_tile(i):
        a(f"s_add_u32 s40, s32, {i+1}\ns_and_b32 s40, s40, 3\ns_mul_i32 s40, s40, 49152\ns_add_u32 s40, s40, s36")
        for s in range(12):
            d = VA_ + 48 * i + 4 * s
            at[i, s] = a(f"buffer_load_dwordx4 v[{d}:{d+3}], v4, s[28:31], s40 offen offset:{1024*(s&3)}")
            if s & 3 == 3 and s < 11:
                a("s_add_u32 s40, s40, 4096")
    a_tile(0)
    for f in range(60):
        bt.append(a(f"buffer_load_dwordx4 a[{4*f}:{4*f+3}], v4, s[28:31], s39 offen offset:{1024*(f&3)}"))
        if f & 3 == 3:
            a("s_add_u32 s39, s39, 4096")
    for i in range(1, 4):
        a_tile(i)
    a(f"""
    s_lshl_b32 s35, s33, 2
    s_add_u32 s35, s35, s32
    s_mul_i32 s41, s35, 20480
    s_mul_i32 s42, s34, 2560
    s_add_u32 s41, s41, s42
    s_add_u32 s41, s41, {HF_OFF}
    v_lshrrev_b32 v8, 1, v3
    v_and_b32 v9, 1, v3
    v_lshlrev_b32 v8, 8, v8
    v_lshl_add_u32 v8, v2, 4, v8
    v_lshl_add_u32 v8, v9, 3, v8
    s_lshl_b32 s35, s35, 4
    v_add_u32 v9, s35, v2
    v_mul_u32_u24 v9, 1280, v9
    v_lshl_add_u32 v9, v3, 3, v9
    s_mul_i32 s42, s34, 160
    s_mul_i32 s35, s32, 15360
    v_add_u32 v10, s35, v4
    """)
    for i in range(3):
        a(f"s_add_u32 s40, s32, {i+1}\ns_and_b32 s40, s40, 3\ns_mul_i32 s40, s40, 15360\ns_add_u32 s40, s40, {5120*i}\nv_add_u32 v{5+i}, s40, v4")
    pend = []
    for i in range(4):
        c = VC + 20 * (i & 1)
        for s in range(12):
            a.wait(at[i, s], bt[5 * s + 4] if i == 0 else None)
            x = VA_ + 48 * i + 4 * s
            for t in range(5):
                w = 4 * (5 * s + t)
                cc = "0" if s == 0 else f"v[{c+4*t}:{c+4*t+3}]"
                a(f"v_mfma_f32_16x16x32_bf16 v[{c+4*t}:{c+4*t+3}], a[{w}:{w+3}], v[{x}:{x+3}], {cc}")
                if s >= 2 and pend and t == 0:
                    a(pend.pop(0))
        if i < 3:
            pend = [f"ds_write_b128 v{5+i}, v[{c+4*t}:{c+4*t+3}] offset:{1024*t}" for t in range(5)]
        if i == 1:
            for t in range(5):
                ht = a(f"buffer_load_dwordx2 v[{VA_+2*t}:{VA_+2*t+1}], v8, s[28:31], s41 offen offset:{512*t}")
    a("s_waitcnt lgkmcnt(0)\ns_barrier")
    c, R = VC + 20, VA_ + 16
    rt = {}
    for t in range(5):
        for i in range(3):
            d = R + 12 * t + 4 * i
            rt[t] = a(f"ds_read_b128 v[{d}:{d+3}], v10 offset:{5120*i + 1024*t}")
    a.wait(ht)
    for t in range(5):
        a.wait(rt[t])
        d = R + 12 * t
        for r in range(4):
            a(f"v_add_f32 v{c+4*t+r}, v{c+4*t+r}, v{d+r}\nv_add_f32 v{d+4+r}, v{d+4+r}, v{d+8+r}")
        for r in range(2):
            x = VA_ + 2 * t + r
            a(f"v_lshlrev_b32 v{d+2*r}, 16, v{x}\nv_and_b32 v{d+2*r+1}, 0xffff0000, v{x}")
        for r in range(4):
            a(f"v_add_f32 v{c+4*t+r}, v{c+4*t+r}, v{d+4+r}")
        for r in range(4):
            a(f"v_add_f32 v{c+4*t+r}, v{c+4*t+r}, v{d+r}")
        a(f"v_cvt_pk_bf16_f32 v{d}, v{c+4*t}, v{c+4*t+1}\nv_cvt_pk_bf16_f32 v{d+1}, v{c+4*t+2}, v{c+4*t+3}")
        a(f"buffer_store_dwordx2 v[{d}:{d+1}], v9, s[16:19], s42 offen offset:{32*t}")
    end(a, n)
    return dict(name=n, vgpr=512, acc=256, lds=61440)


def build(kernels, extra_launches=()):
    body, infos = "", []
    for k in kernels:
        a = Asm()
        infos.append(k(a))
        body += a.text()
    head = open("cdna_kernels/%s.s.ref" % NAME).read().split("; Override launch")[0]
    s = head
    for i in infos:
        s += f"; @launch kernel={i['name']} grid=(256,1,1) block=(256,1,1) lds={i['lds']}\n"
    s += '.amdgcn_target "amdgcn-amd-amdhsa--gfx950"\n.text\n' + body
    s += '.section .rodata,"a"\n'
    for i in infos:
        s += f""".p2align 6
.amdhsa_kernel {i['name']}
  .amdhsa_next_free_vgpr {i['vgpr']}
  .amdhsa_next_free_sgpr 102
  .amdhsa_accum_offset {i['acc']}
  .amdhsa_group_segment_fixed_size 0
  .amdhsa_kernarg_size 96
  .amdhsa_user_sgpr_count 2
  .amdhsa_user_sgpr_kernarg_segment_ptr 1
  .amdhsa_system_sgpr_workgroup_id_x 1
.end_amdhsa_kernel
"""
    return s


if __name__ == "__main__":
    out = sys.argv[1] if len(sys.argv) > 1 else "cdna_kernels/%s.s" % NAME
    open(out, "w").write(build([k_qkv, k_attn, k_wo, k_gu, k_down]))
```

```python
import struct, sys, math
from asmlib import *

NAME = "sequential_preLN__grouped_kv_mqa__swiglu_ffn__prompt"
QF_OFF = 0x000000
KV_OFF = 0x300000
FL_OFF = 0x340000
OF_OFF = 0x350000
HF_OFF = 0x5D0000
ST_OFF = 0x850000
AF_OFF = 0x870000
WG_OFF = 0xE70000
WU_OFF = WG_OFF + 0x1E0000
WO_OFF = WU_OFF + 0x1E0000
WD_OFF = WO_OFF + 0xC8000
WS_END = WD_OFF + 0x1E0000
FL_XCC, FL_W, FL_O, FL_H, FL_A = 0, 0x1000, 0x2000, 0x6000, 0x8000
KVB = 5632
XB = 2048 * 640 * 2
LOG2E = 1.4426950408889634
SPIN = 200000
OPT = set()


def fbits(x):
    return "0x%08x" % struct.unpack("<I", struct.pack("<f", x))[0]


def srd(a, d, base, size):
    a(f"s_mov_b32 s{d}, s{base}\ns_and_b32 s{d+1}, s{base+1}, 0xffff\ns_mov_b32 s{d+2}, {size}\ns_mov_b32 s{d+3}, 0x20000")


def begin(a, name):
    a.raw(".p2align 8")
    a.raw(f".globl {name}")
    a.raw(f".type {name},@function")
    a.label(name)
    a(f"s_cmp_ge_u32 s2, 256\ns_cbranch_scc1 L_{name}_end")


def end(a, name):
    a.label(f"L_{name}_end")
    a("s_endpgm")


def stamp(a, n):
    a.raw(f"; stamp {n}")


def ids(a):
    a("""
    v_lshrrev_b32 v1, 6, v0
    s_and_b32 s33, s2, 7
    s_lshr_b32 s34, s2, 3
    v_readfirstlane_b32 s32, v1
    v_and_b32 v1, 63, v0
    s_lshr_b32 s35, s34, 3
    s_lshl_b32 s33, s33, 2
    s_add_u32 s33, s33, s35
    s_and_b32 s34, s34, 7
    v_and_b32 v2, 15, v1
    v_lshrrev_b32 v3, 4, v1
    """)


def emit(a, x):
    return x() if callable(x) else a(x)


def xreduce4(a, v, t):
    a(f"v_mov_b32 v{t}, v{v}\nv_permlane16_swap_b32 v{v}, v{t}\nv_add_f32 v{v}, v{v}, v{t}")
    a(f"v_mov_b32 v{t}, v{v}\nv_permlane32_swap_b32 v{v}, v{t}\nv_add_f32 v{v}, v{v}, v{t}")


def cost(x):
    if callable(x):
        return 1
    op = x.split()[0]
    if op in TRANS:
        return 2
    if op.startswith("s_"):
        return 0
    return 1


def gap(a, q, budget=2):
    if q and cost(q[0]) == 0:
        emit(a, q.pop(0))
    while q and budget > 0:
        c = max(cost(q[0]), 1)
        if c > budget:
            break
        if cost(q[0]) == 0 and budget < 2:
            break
        emit(a, q.pop(0))
        budget -= c


def k_qkv(a):
    n = "qkv_kernel"
    begin(a, n)
    a("s_load_dwordx8 s[4:11], s[0:1], 0\ns_load_dwordx2 s[12:13], s[0:1], 88")
    ids(a)
    VX, VW, VACC = 64, 144, 204
    VA, VT, VXA, VXR = 5, 10, 32, 36
    L_KW, L_W1 = 81920, 110592
    for g in range(4):
        a(f"""
        v_add_u32 v20, {4*g}, v3
        v_xor_b32 v21, v20, v2
        v_mul_u32_u24 v20, 1280, v20
        v_lshl_add_u32 v{VXA+g}, v21, 4, v20
        """)
        if g:
            a(f"v_subrev_u32 v{VXA+g}, {1024*g}, v{VXA+g}")
    a("""
    s_lshl_b32 s35, s33, 2
    s_add_u32 s35, s35, s32
    s_mul_i32 s36, s35, 20480
    s_mul_i32 s39, s32, 20480
    s_mov_b32 m0, s39
    s_waitcnt lgkmcnt(0)
    """)
    srd(a, 16, 4, XB)
    xt = []
    for j in range(5):
        for g in range(4):
            t = a(f"buffer_load_dwordx4 v{VXA+g}, s[16:19], s36 offen offset:{1024*g} lds")
        xt.append(t)
        if j < 4:
            a("s_add_u32 s36, s36, 256\ns_add_u32 m0, m0, 4096")
    a("s_bitcmp1_b32 s34, 1\ns_cselect_b32 s14, s10, s8\ns_cselect_b32 s15, s11, s9")
    srd(a, 24, 14, 25600)
    a("s_cmp_ge_u32 s34, 4\ns_cselect_b32 s26, 0, s26")
    a(f"s_mul_i32 s36, s32, 7168\ns_add_u32 m0, s36, {L_KW}\nv_lshlrev_b32 v13, 4, v1")
    for i in range(4):
        a(f"buffer_load_dwordx4 v13, s[24:27], s36 offen offset:{1024*i} lds")
    a("s_add_u32 s36, s36, 4096\ns_add_u32 m0, m0, 4096")
    for i in range(3):
        kt = a(f"buffer_load_dwordx4 v13, s[24:27], s36 offen offset:{1024*i} lds")
    srd(a, 20, 6, 640 * 640 * 2)
    for i in range(5):
        d = VA + i
        a(f"""
        v_add_u32 v20, {64*i}, v1
        v_mul_u32_u24 v21, 6554, v20
        v_lshrrev_b32 v21, 16, v21
        v_mul_u32_u24 v22, 10, v21
        v_sub_u32 v20, v20, v22
        v_and_b32 v22, 3, v21
        v_bfe_u32 v{d}, v21, 2, 2
        v_lshl_add_u32 v22, v{d}, 3, v22
        v_lshrrev_b32 v21, 4, v21
        v_lshl_add_u32 v21, v21, 2, v22
        v_mul_u32_u24 v21, 1280, v21
        v_lshl_add_u32 v{d}, v20, 4, v21
        """)
        if 0 < i < 4:
            a(f"v_subrev_u32 v{d}, {1024*i}, v{d}")
    a(f"s_mul_i32 s36, s34, 160\ns_mul_i32 s37, s32, 40960\ns_add_u32 s36, s36, s37\ns_mul_i32 s37, s32, 5120\ns_add_u32 s37, s37, {L_W1}")
    wt = {}

    def w_group(g):
        o = [f"s_add_u32 m0, s37, {20480*g}" if g < 2 else f"s_add_u32 m0, s39, {5120*(g-2)}"]
        o += [f"buffer_load_dwordx4 v{VA+i}, s[20:23], s36 offen offset:{1024*i} lds" for i in range(4)]
        o += ["s_add_u32 m0, m0, 4096"]
        def last():
            wt[g] = a(f"buffer_load_dwordx4 v{VA+4}, s[20:23], s36 offen lds")
        return o + [last, f"s_add_u32 s36, s36, {4*40960}"]
    for x in w_group(0):
        emit(a, x)
    srd(a, 28, 12, WS_END)
    a(f"s_lshl_b32 s38, s2, 8\ns_add_u32 s38, s38, {FL_OFF}\nv_lshlrev_b32 v20, 2, v1\nv_mov_b32 v21, 0")
    a("buffer_store_dword v21, v20, s[28:31], s38 offen")
    for sp in range(4):
        a(f"""
        v_add_u32 v20, {4*sp}, v3
        v_xor_b32 v20, v20, v2
        v_lshlrev_b32 v20, 4, v20
        v_lshl_add_u32 v20, v2, 8, v20
        v_add_u32 v{VXR+sp}, s39, v20
        """)
    a(f"""
    v_lshrrev_b32 v20, 2, v1
    v_mul_u32_u24 v20, 160, v20
    v_and_b32 v{VT}, 3, v1
    v_lshl_add_u32 v{VT}, v{VT}, 3, v20
    v_add_u32 v{VT+1}, 40960, v{VT}
    v_add_u32 v{VT+2}, {L_W1}, v{VT}
    v_mov_b32 v14, 0
    v_mov_b32 v15, 0
    v_mov_b32 v16, 0
    v_mov_b32 v17, 0
    v_mov_b32 v18, 0x3f803f80
    """)
    stamp(a, "issued")
    rt = {}
    def xread(j):
        a.wait(xt[j])
        for sp in range(4):
            x = VX + 16 * j + 4 * sp
            rt[j] = a(f"ds_read_b128 v[{x}:{x+3}], v{VXR+sp} offset:{4096*j}")
    bg = w_group(1)
    xread(0)
    for j in range(5):
        if j < 4:
            xread(j + 1)
        a.wait(rt[j])
        for r in range(16):
            x = VX + 16 * j + r
            a(f"v_dot2c_f32_bf16 v{14 + (r & 1)}, v{x}, v18\nv_dot2c_f32_bf16 v{16 + (r & 1)}, v{x}, v{x}")
            if r % 8 == 7 and bg:
                emit(a, bg.pop(0))
    for x in bg:
        emit(a, x)
    stamp(a, "xdone")
    a("v_add_f32 v14, v14, v15\nv_add_f32 v16, v16, v17")
    xreduce4(a, 14, 15)
    xreduce4(a, 16, 17)
    a(f"""
    v_mul_f32 v14, {fbits(1/640)}, v14
    v_mul_f32 v16, {fbits(1/640)}, v16
    v_fma_f32 v16, -v14, v14, v16
    v_max_f32 v16, 0, v16
    v_add_f32 v16, {fbits(1e-5)}, v16
    v_rsq_f32 v16, v16
    v_mul_f32_e64 v14, -v14, v16
    v_mov_b32 v17, v16
    v_mov_b32 v15, v14
    """)
    bg = w_group(2) + w_group(3) + w_group(4)
    for s in range(20):
        for r in range(4):
            x, t = VX + 4 * s + r, 20 + 2 * r
            a(f"v_lshlrev_b32 v{t}, 16, v{x}\nv_and_b32 v{t+1}, 0xffff0000, v{x}")
        for r in range(4):
            t = 20 + 2 * r
            a(f"v_pk_fma_f32 v[{t}:{t+1}], v[{t}:{t+1}], v[16:17], v[14:15]")
        for r in range(4):
            x, t = VX + 4 * s + r, 20 + 2 * r
            a(f"v_cvt_pk_bf16_f32 v{x}, v{t}, v{t+1}")
        while bg:
            x = bg.pop(0)
            emit(a, x)
            if cost(x):
                break
    for x in bg:
        emit(a, x)
    stamp(a, "normed")
    a.wait(wt[0])
    a("s_barrier")
    vm_before = a.vm
    a("s_cmp_ge_u32 s34, 4\ns_cbranch_scc1 L_qkv_q")
    a(f"""
    v_bfe_u32 v20, v1, 2, 2
    v_lshl_add_u32 v20, v3, 3, v20
    v_mul_u32_u24 v20, 40, v20
    v_and_b32 v21, 3, v1
    v_lshlrev_b32 v21, 3, v21
    s_bitcmp1_b32 s34, 0
    s_cselect_b32 s36, 0, -1
    s_cselect_b32 s37, 32, 0
    v_and_b32 v21, s36, v21
    s_add_u32 s37, s37, {L_KW}
    v_add3_u32 v20, v20, v21, s37
    s_mul_i32 s36, s33, {KVB}
    s_add_u32 s36, s36, {KV_OFF}
    """)
    VK, VC = 144, 224
    kr = []
    for s in range(20):
        for h in range(2):
            t = a(f"ds_read_b64_tr_b16 v[{VK+4*s+2*h}:{VK+4*s+2*h+1}], v20 offset:{s*1280 + 160*h}")
        kr.append(t)
    a("v_lshrrev_b32 v22, 1, v3\nv_and_b32 v23, 1, v3\ns_lshl_b32 s37, s32, 4\nv_add_u32 v24, s37, v2")
    a("s_bitcmp1_b32 s34, 1\ns_cbranch_scc1 L_qkv_v")
    for isv in range(2):
        for s in range(20):
            if s in (0, 13, 16, 18):
                a.wait(kr[{0: 12, 13: 15, 16: 17, 18: 19}[s]])
            c = VC + 4 * (s & 1)
            cc = "0" if s < 2 else f"v[{c}:{c+3}]"
            w, x = f"v[{VK+4*s}:{VK+4*s+3}]", f"v[{VX+4*s}:{VX+4*s+3}]"
            a(f"v_mfma_f32_16x16x32_bf16 v[{c}:{c+3}], {x if isv else w}, {w if isv else x}, {cc}")
        if not isv:
            a("""
            v_lshrrev_b32 v25, 5, v24
            v_and_b32 v26, 31, v24
            v_lshl_add_u32 v26, v22, 5, v26
            v_lshl_add_u32 v26, v25, 6, v26
            v_lshlrev_b32 v26, 4, v26
            v_lshl_add_u32 v26, v23, 3, v26
            v_lshlrev_b32 v24, 3, v24
            v_add_u32 v24, 2048, v24
            s_bitcmp1_b32 s34, 0
            s_cselect_b64 vcc, -1, 0
            s_cselect_b64 s[40:41], 0xffff, -1
            v_cndmask_b32 v24, v26, v24, vcc
            s_mov_b64 s[42:43], 0
            s_branch L_qkv_kvj
            """)
            a.label("L_qkv_v")
        else:
            a("""
            s_mul_i32 s37, s32, 768
            s_add_u32 s37, s37, 2560
            v_mul_u32_u24 v24, 384, v22
            v_lshl_add_u32 v24, v23, 3, v24
            v_lshl_add_u32 v24, v2, 4, v24
            s_bitcmp1_b32 s34, 0
            s_cselect_b32 s38, 256, 0
            s_cselect_b32 s40, 0x00ff00ff, -1
            s_cselect_b32 s42, 0x00f000f0, 0
            s_mov_b32 s41, s40
            s_mov_b32 s43, s42
            s_add_u32 s37, s37, s38
            v_add_u32 v24, s37, v24
            """)
    a.label("L_qkv_kvj")
    a("v_cmp_eq_u32 vcc, 4, v2\nv_cndmask_b32 v25, 0, v18, vcc")
    for r in range(4):
        a(f"v_add_f32 v{VC+r}, v{VC+r}, v{VC+4+r}")
    a(f"v_cvt_pk_bf16_f32 v{VC}, v{VC}, v{VC+1}\nv_cvt_pk_bf16_f32 v{VC+1}, v{VC+2}, v{VC+3}")
    a(f"v_cndmask_b32 v{VC}, v{VC}, v25, s[42:43]\nv_cndmask_b32 v{VC+1}, v{VC+1}, v25, s[42:43]")
    a(f"s_mov_b64 exec, s[40:41]\nbuffer_store_dwordx2 v[{VC}:{VC+1}], v24, s[28:31], s36 offen\ns_mov_b64 exec, -1")
    a.label("L_qkv_q")
    a.vm = vm_before
    stamp(a, "kvdone")

    def reads(s):
        if s < 8:
            base, off = VT + 2, s * 5120
        else:
            o = (s & 3) * 20480 + ((s >> 2) - 2) * 5120
            base, off = (VT, o) if o < 40960 else (VT + 1, o - 40960)
        b = VW + 20 * (s % 3)
        return [f"ds_read_b64_tr_b16 v[{b+4*t+2*h}:{b+4*t+2*h+1}], v{base} offset:{off + 2560*h + 32*t}"
                for t in range(5) for h in range(2)]
    rq = []
    tok = {}
    for s in range(20):
        if s % 4 == 0 and s:
            def sync(g=s // 4):
                a.wait(wt[g])
                a("s_barrier")
            rq.append(sync)
        for i, r in enumerate(reads(s)):
            def rd(r=r, key=(s, i // 2)):
                tok[key] = a(r)
            rq.append(rd)
    for _ in range(12):
        rq.pop(0)()
    for s in range(20):
        b = VW + 20 * (s % 3)
        for t in range(5):
            while (s, t) not in tok or (rq and len(tok) < 5 * s + t + 6):
                rq.pop(0)()
            a.wait(tok[s, t])
            cc = "0" if s == 0 else f"v[{VACC+4*t}:{VACC+4*t+3}]"
            a(f"v_mfma_f32_16x16x32_bf16 v[{VACC+4*t}:{VACC+4*t+3}], v[{b+4*t}:{b+4*t+3}], v[{VX+4*s}:{VX+4*s+3}], {cc}")
            for _ in range(2):
                if rq:
                    rq.pop(0)()
    stamp(a, "mainend")
    a(f"""
    s_mov_b32 s38, {fbits(LOG2E / math.sqrt(20))}
    s_mul_i32 s36, s32, {16*168}
    s_add_u32 s36, s36, {L_W1}
    v_mul_u32_u24 v20, 168, v2
    v_lshl_add_u32 v20, v3, 3, v20
    v_add_u32 v20, s36, v20
    s_lshr_b32 s37, s32, 1
    s_and_b32 s40, s32, 1
    s_mul_i32 s36, s37, {32*168}
    s_mul_i32 s41, s40, 80
    s_add_u32 s36, s36, s41
    s_add_u32 s36, s36, {L_W1}
    v_and_b32 v21, 31, v1
    v_mul_u32_u24 v21, 168, v21
    v_add_u32 v21, s36, v21
    v_lshrrev_b32 v22, 5, v1
    v_lshl_add_u32 v22, v22, 4, v21
    """)
    for t in range(5):
        c = VACC + 4 * t
        for r in range(4):
            a(f"v_mul_f32 v{c+r}, s38, v{c+r}")
        a(f"v_cvt_pk_bf16_f32 v{c}, v{c}, v{c+1}\nv_cvt_pk_bf16_f32 v{c+1}, v{c+2}, v{c+3}")
        a(f"ds_write_b64 v20, v[{c}:{c+1}] offset:{32*t}")
    a(f"""
    s_lshl_b32 s36, s2, 1
    s_add_u32 s36, s36, s37
    s_mul_i32 s36, s36, 6144
    s_mul_i32 s41, s40, 3072
    s_add_u32 s36, s36, s41
    s_add_u32 s36, s36, {QF_OFF}
    s_waitcnt lgkmcnt(0)
    s_barrier
    ds_read2_b64 v[64:67], v22 offset0:0 offset1:1
    ds_read2_b64 v[68:71], v22 offset0:5 offset1:6
    ds_read2_b64 v[72:75], v21 offset0:4 offset1:9
    s_waitcnt lgkmcnt(0)
    buffer_store_dwordx4 v[64:67], v13, s[28:31], s36 offen
    buffer_store_dwordx4 v[68:71], v13, s[28:31], s36 offen offset:1024
    buffer_store_dwordx4 v[72:75], v13, s[28:31], s36 offen offset:2048
    """)
    end(a, n)
    return dict(name=n, vgpr=256, acc=256, lds=163840)


SA, SB, VO, VQ, VKV = 16, 48, 80, 144, 168
VIDX = 15
L_E = 102400
AXR = 240


def q16(t):
    return VQ + 12 * (t >> 1) + 4 * (t & 1)


def q4(t):
    return VQ + 12 * (t >> 1) + 8 + 2 * (t & 1)


def kreg(n):
    return VKV + 26 * (n % 3)


def vreg(n):
    return VKV + 26 * (n % 3) + 10


def pv(t, v, s):
    o = VO + 16 * t
    return f"v_smfmac_f32_32x32x32_bf16 v[{o}:{o+15}], v[{v}:{v+3}], v[{s}:{s+7}], v{VIDX}"


def qk4(sn, k, t, cz="0"):
    return f"v_mfma_f32_32x32x4bf16_1k v[{sn}:{sn+31}], v[{k+8}:{k+9}], v[{q4(t)}:{q4(t)+1}], {cz}"


def qk16(sn, k, t, hi):
    d = sn + 16 * hi
    return f"v_mfma_f32_32x32x16_bf16 v[{d}:{d+15}], v[{k+4*hi}:{k+4*hi+3}], v[{q16(t)}:{q16(t)+3}], v[{d}:{d+15}]"


def att_half(a, blk, tile, slots, first, last):
    sc, sn = (SA, SB) if tile % 2 == 0 else (SB, SA)
    nt, nb = (tile + 1) & 3, blk + (tile == 3)
    pt, pb = (tile - 1) & 3, blk - (tile == 0)
    def E(lo, hi):
        for i in range(lo, hi):
            a(f"v_exp_f32 v{sc+i}, v{sc+i}")
    def M(t):
        if t is None:
            return
        a(t)
        slots()
    v = vreg(blk)
    E(0, 2)
    M(None if first else pv(pt, vreg(pb) + 12, sn + 24))
    E(2, 5)
    M(None if last else qk4(sn, kreg(nb), nt))
    E(5, 13)
    M(pv(tile, v, sc))
    E(13, 18)
    M(pv(tile, v + 4, sc + 8))
    E(18, 21)
    M(None if last else qk16(sn, kreg(nb), nt, 0))
    E(21, 24)
    M(None if last else qk16(sn, kreg(nb), nt, 1))
    E(24, 28)
    M(pv(tile, v + 8, sc + 16))
    E(28, 32)


def poll(a, name, vaddr, soff, cmp, nl, first=None, vt=14):
    if nl < 64:
        a(f"s_mov_b64 exec, {hex((1 << nl) - 1)}")
    a(f"s_mov_b32 s60, {SPIN}")
    if first is not None:
        a.wait(first)
        a(cmp.format(v=vt))
        a(f"s_nop 3\ns_cbranch_vccz L_{name}_ok")
    a.label(f"L_{name}_spin")
    vm = a.vm
    a(f"buffer_load_dword v{vt}, v{vaddr}, s[28:31], {soff} offen sc1")
    a.vm = vm
    a("s_sub_u32 s60, s60, 1\ns_waitcnt vmcnt(0)")
    a(cmp.format(v=vt))
    a(f"s_cmp_eq_u32 s60, 0\ns_cbranch_scc1 L_{name}_ok\ns_nop 1\ns_cbranch_vccnz L_{name}_spin")
    a.label(f"L_{name}_ok")
    if nl < 64:
        a("s_mov_b64 exec, -1")


_uid = [0]


def stores(a, lines):
    _uid[0] += 1
    u = _uid[0]
    a(f"s_cmp_eq_u32 s61, 0\ns_cbranch_scc1 L_st{u}_g")
    tok = None
    for l in lines:
        tok = a(l) or tok
    a.label(f"L_st{u}_j")
    a.cold.append((f"L_st{u}_g", [l + " sc1" if l.startswith("buffer_store") else l for l in lines], f"L_st{u}_j"))
    return tok


def k_main(a):
    n = "main_kernel"
    a.cold = []
    begin(a, n)
    a("s_load_dwordx2 s[12:13], s[0:1], 88\ns_load_dwordx2 s[4:5], s[0:1], 0\ns_load_dwordx2 s[6:7], s[0:1], 32\ns_load_dwordx8 s[44:51], s[0:1], 48")
    ids(a)
    a(f"""
    v_lshlrev_b32 v4, 4, v1
    v_lshlrev_b32 v5, 3, v1
    v_lshlrev_b32 v9, 2, v1
    v_and_b32 v7, 31, v1
    v_lshrrev_b32 v8, 5, v1
    v_bfe_u32 v10, v1, 2, 1
    v_bfe_u32 v11, v1, 3, 1
    v_and_b32 v6, 3, v1
    v_lshl_add_u32 v6, v10, 3, v6
    v_lshl_add_u32 v6, v11, 2, v6
    v_min_u32 v10, 21, v7
    v_cmp_gt_u32 vcc, 16, v7
    v_cndmask_b32 v6, v10, v6, vcc
    v_lshlrev_b32 v6, 4, v6
    v_mul_u32_u24 v10, 384, v8
    v_add_u32 v6, v6, v10
    v_add_u32 v6, 2560, v6
    s_and_b32 s36, s32, 1
    s_lshr_b32 s37, s32, 1
    s_lshl_b32 s38, s2, 1
    s_add_u32 s38, s38, s37
    s_mul_i32 s38, s38, 6144
    s_add_u32 s38, s38, {QF_OFF}
    s_add_u32 s39, s38, 3072
    s_mul_i32 s43, s36, {16*KVB}
    s_add_u32 s43, s43, {KV_OFF}
    s_mov_b32 s40, s43
    s_mov_b32 s41, s43
    v_mov_b32 v{VIDX}, 0xdddddddd
    s_waitcnt lgkmcnt(0)
    """)
    srd(a, 28, 12, WS_END)
    for p in range(2):
        for i in range(3):
            d = VQ + 12 * p + 4 * i
            a(f"buffer_load_dwordx4 v[{d}:{d+3}], v4, s[28:31], s{38+p} offen offset:{1024*i}")
    ktok, vtok = {}, {}

    def kloads(b):
        k = kreg(b)
        def last():
            ktok[b] = a(f"buffer_load_dwordx2 v[{k+8}:{k+9}], v5, s[28:31], s40 offen offset:2048")
        return [f"buffer_load_dwordx4 v[{k}:{k+3}], v4, s[28:31], s40 offen",
                f"buffer_load_dwordx4 v[{k+4}:{k+7}], v4, s[28:31], s40 offen offset:1024", last,
                f"s_add_u32 s40, s40, {KVB}"]

    def vloads(b):
        v = vreg(b)
        def last():
            vtok[b] = a(f"buffer_load_dwordx4 v[{v+12}:{v+15}], v6, s[28:31], s41 offen offset:2304")
        return [f"buffer_load_dwordx4 v[{v+4*j}:{v+4*j+3}], v6, s[28:31], s41 offen offset:{768*j}" for j in range(3)] \
            + [last, f"s_add_u32 s41, s41, {KVB}"]
    for x in kloads(0) + vloads(0) + kloads(1) + vloads(1) + kloads(2) + vloads(2):
        emit(a, x)

    a(f"""
    s_lshl_b32 s8, s2, 2
    s_add_u32 s8, s8, s32
    s_mov_b32 s16, s44
    s_mov_b32 s17, s45
    s_mov_b32 s18, {640*1536*2}
    s_mov_b32 s19, 0x20000
    s_movk_i32 s11, 3072
    s_movk_i32 s15, 5462
    s_cmp_ge_u32 s8, 240
    s_cselect_b32 s16, s46, s16
    s_cselect_b32 s17, s47, s17
    s_cselect_b32 s10, 240, 0
    s_cmp_ge_u32 s8, 480
    s_cselect_b32 s16, s6, s16
    s_cselect_b32 s17, s7, s17
    s_cselect_b32 s18, {640*640*2}, s18
    s_cselect_b32 s10, 480, s10
    s_cselect_b32 s11, 1280, s11
    s_cselect_b32 s14, 5, 12
    s_cselect_b32 s15, 13108, s15
    s_cmp_ge_u32 s8, 580
    s_cselect_b32 s16, s48, s16
    s_cselect_b32 s17, s49, s17
    s_cselect_b32 s18, {1536*640*2}, s18
    s_cselect_b32 s10, 580, s10
    s_cmp_ge_u32 s8, 820
    s_cselect_b32 s18, 0, s18
    s_and_b32 s17, s17, 0xffff
    s_lshl_b32 s42, s8, 13
    s_add_u32 s42, s42, {WG_OFF}
    s_sub_u32 s9, s8, s10
    s_mul_i32 s15, s9, s15
    s_lshr_b32 s15, s15, 16
    s_mul_i32 s14, s15, s14
    s_sub_u32 s9, s9, s14
    s_mul_i32 s14, s15, 13108
    s_lshr_b32 s14, s14, 16
    s_mul_i32 s35, s14, 5
    s_sub_u32 s35, s15, s35
    """)
    a(f"""
    s_cmp_eq_u32 s35, 2
    s_cselect_b32 s38, 0, 32
    s_lshl_b32 s39, s15, 5
    s_cmp_eq_u32 s10, 580
    s_cselect_b32 s38, 0, s38
    s_lshl_b32 s35, s35, 5
    s_add_u32 s35, s35, 64
    s_mul_i32 s14, s14, 160
    s_cmp_eq_u32 s10, 480
    s_cselect_b32 s38, s35, s38
    s_cselect_b32 s39, s14, s39
    s_getpc_b64 s[20:21]
    """)
    a.label("L_pc0")
    a("s_add_u32 s20, s20, L_runs-L_pc0\ns_addc_u32 s21, s21, 0\ns_load_dwordx8 s[52:59], s[20:21], s38")
    a(f"""
    s_mul_i32 s39, s39, s11
    s_lshl_b32 s9, s9, 8
    s_add_u32 s39, s39, s9
    v_mul_lo_u32 v10, v3, s11
    v_lshl_add_u32 v10, v2, 4, v10
    s_lshl_b32 s9, s32, 13
    s_add_u32 s9, s9, {L_E}
    v_bfe_u32 v11, v1, 2, 2
    v_lshl_add_u32 v11, v3, 3, v11
    v_lshlrev_b32 v11, 8, v11
    v_and_b32 v12, 3, v1
    v_lshl_add_u32 v11, v12, 3, v11
    v_add_u32 v11, s9, v11
    """)
    for i in range(64):
        a(f"v_mov_b32 v{VO+i}, 0")
    a("s_waitcnt lgkmcnt(0)")
    for i in range(8):
        a(f"s_mul_i32 s{52+i}, s{52+i}, s11\ns_add_u32 s{52+i}, s{52+i}, s39")
    stamp(a, "pro")
    a.wait(ktok[0])
    a(qk4(SA, kreg(0), 0))
    a("s_mov_b32 m0, s9")
    for i in range(8):
        rawt = a(f"buffer_load_dwordx4 v10, s[16:19], s{52+i} offen lds")
        if i < 7:
            a("s_add_u32 m0, m0, 1024")
    a(f"""
    s_getreg_b32 s8, hwreg(HW_REG_XCC_ID, 0, 4)
    s_add_u32 s8, s8, 1
    s_lshr_b32 s14, s33, 1
    s_lshr_b32 s15, s2, 3
    s_and_b32 s15, s15, 15
    s_lshl_b32 s10, s14, 8
    s_add_u32 s10, s10, {FL_OFF + FL_XCC}
    s_lshl_b32 s11, s15, 2
    s_add_u32 s11, s11, s10
    v_mov_b32 v12, s8
    v_mov_b32 v13, 0
    s_mov_b64 exec, 1
    buffer_store_dword v12, v13, s[28:31], s11 offen sc1
    s_mov_b64 exec, -1
    """)
    a(qk16(SA, kreg(0), 0, 0))
    a(qk16(SA, kreg(0), 0, 1))
    srd(a, 20, 4, XB)
    srd(a, 24, 50, XB)
    a.wait(vtok[0])
    stamp(a, "loop0")

    T = {}
    def tk(name, text):
        def f():
            T[name] = a(text)
        return f
    def wt(*names):
        return lambda: a.wait(*[T[x] for x in names])
    bgq = {b: [] for b in range(16)}
    T["raw"] = rawt
    B_TR, B_SIG, B_POLL = 3, 6, 8
    bgq[1] += ["s_lshl_b32 s35, s33, 2", "s_add_u32 s35, s35, s32", "s_mul_i32 s52, s35, 20480",
               "s_and_b32 s53, s34, 1", "s_mul_i32 s54, s34, 160", "s_add_u32 s54, s54, s52",
               "s_lshl_b32 s55, s53, 5", "s_add_u32 s55, s55, s54", "s_lshl_b32 s56, s53, 7", "s_sub_u32 s56, s54, s56",
               "v_mul_u32_u24 v12, 1280, v2", "v_lshl_add_u32 v12, v3, 3, v12"]
    bgq[1] += [f"buffer_load_dwordx2 a[{AXR+2*t}:{AXR+2*t+1}], v12, s[20:23], s{55 if t < 4 else 56} offen offset:{32*t}" for t in range(5)]
    bgq[B_TR] += [wt("raw")]
    for u in range(8):
        for h in range(2):
            bgq[B_TR].append(tk("tr", f"ds_read_b64_tr_b16 a[{4*u+2*h}:{4*u+2*h+1}], v11 offset:{32*u+1024*h}"))
    bgq[B_TR + 1] += ["s_add_u32 s9, s42, 4096", wt("tr")]
    for u in range(8):
        bgq[B_TR + 1].append(tk("pfst", f"buffer_store_dwordx4 a[{4*u}:{4*u+3}], v4, s[28:31], s{42 if u < 4 else 9} offen offset:{1024*(u&3)} sc1"))
    bgq[B_SIG] += ["s_and_b32 s9, s2, 15", "s_lshl_b32 s9, s9, 8", f"s_add_u32 s9, s9, {FL_OFF + FL_W}", "v_mov_b32 v12, 1", wt("pfst")]
    def sig():
        a("s_mov_b64 exec, 1\nbuffer_atomic_add v12, v13, s[28:31], s9 offen sc1\ns_mov_b64 exec, -1")
    bgq[B_SIG] += [sig, "v_lshlrev_b32 v12, 8, v2", f"s_mov_b32 s9, {FL_OFF + FL_W}", "v_lshlrev_b32 v10, 2, v2"]
    bgq[B_POLL - 1] += [tk("xcc", "buffer_load_dword v11, v10, s[28:31], s10 offen sc1")]
    bgq[B_POLL - 1] += [None] * 12 + [tk("wfl", "buffer_load_dword v14, v12, s[28:31], s9 offen sc1")]
    def wpoll():
        poll(a, "w", 12, "s9", "v_cmp_ne_u32 vcc, 64, v{v}", 64, T["wfl"])
        poll(a, "x", 10, "s10", "v_cmp_eq_u32 vcc, 0, v{v}", 64, T["xcc"], vt=11)
        a("v_cmp_ne_u32 vcc, s8, v11\ns_nop 1\ns_cmp_eq_u64 vcc, 0\ns_cselect_b32 s61, 1, 0")
        if "global" in OPT:
            a("s_mov_b32 s61, 0")
    bgq[B_POLL] += [None] * 4 + [wpoll]
    wq = [f"s_mul_i32 s9, s32, {5*40960}", "s_mul_i32 s10, s34, 5120", "s_add_u32 s9, s9, s10", f"s_add_u32 s9, s9, {WO_OFF}",
          "s_mul_i32 s10, s32, 25600"]
    for s in range(5):
        wq += [f"s_add_u32 m0, s10, {5120*s}"]
        wq += [f"buffer_load_dwordx4 v4, s[28:31], s9 offen offset:{1024*i} sc1 lds" for i in range(4)]
        wq += ["s_add_u32 s9, s9, 4096", "s_add_u32 m0, m0, 4096", tk("wo", "buffer_load_dwordx4 v4, s[28:31], s9 offen sc1 lds"),
               f"s_add_u32 s9, s9, {40960-4096}"]
    wq += ["s_lshl_b32 s9, s15, 2", "s_add_u32 s9, s9, s32", "s_mul_i32 s57, s9, 24",
           "v_add_u32 v10, s57, v2", "v_lshrrev_b32 v12, 4, v10", "v_and_b32 v10, 15, v10", "v_lshlrev_b32 v10, 4, v10",
           "v_lshl_add_u32 v10, v12, 10, v10", "v_lshl_add_u32 v10, v3, 8, v10",
           "v_and_b32 v11, 7, v2", "s_add_u32 s9, s57, 16", "v_add_u32 v11, s9, v11", "v_lshrrev_b32 v12, 4, v11",
           "v_and_b32 v11, 15, v11", "v_lshlrev_b32 v11, 4, v11", "v_lshl_add_u32 v11, v12, 10, v11",
           "v_lshl_add_u32 v11, v3, 8, v11", "v_lshrrev_b32 v12, 3, v2", f"v_mul_u32_u24 v12, {WU_OFF-WG_OFF}, v12",
           "v_add_u32 v11, v11, v12", f"s_mov_b32 s9, {WG_OFF}", f"s_mov_b32 s10, {WU_OFF}"]
    for s in range(20):
        w = 12 * s
        wq += [f"buffer_load_dwordx4 a[{w}:{w+3}], v10, s[28:31], s9 offen sc1",
               f"buffer_load_dwordx4 a[{w+4}:{w+7}], v10, s[28:31], s10 offen sc1",
               "s_add_u32 s10, s10, 98304",
               tk("wgu", f"buffer_load_dwordx4 a[{w+8}:{w+11}], v11, s[28:31], s9 offen sc1"),
               "s_add_u32 s9, s9, 98304"]
    tq = ["s_lshl_b32 s58, s33, 2", "s_lshl_b32 s59, s37, 1", "s_add_u32 s58, s58, s59", "s_mul_i32 s58, s58, 20480",
          "s_mul_i32 s59, s34, 2560", "s_add_u32 s58, s58, s59", "s_mul_i32 s35, s36, 1280", "s_add_u32 s58, s58, s35",
          f"s_add_u32 s58, s58, {OF_OFF}", "s_add_u32 s59, s59, s52", f"s_add_u32 s59, s59, {HF_OFF}"]
    if "notouch" not in OPT:
        tq += ["v_min_u32 v12, 19, v7", "v_lshlrev_b32 v12, 6, v12", "v_mul_u32_u24 v13, 20480, v8", "v_add_u32 v12, v12, v13",
               "buffer_load_dword v14, v12, s[28:31], s58 offen sc1",
               "v_min_u32 v12, 39, v1", "v_lshlrev_b32 v12, 6, v12",
               "buffer_load_dword v14, v12, s[28:31], s59 offen sc1",
               f"s_mul_i32 s35, s14, {8*49152}", "s_lshl_b32 s38, s57, 5", "s_add_u32 s35, s35, s38", f"s_add_u32 s35, s35, {AF_OFF}",
               "v_min_u32 v12, 11, v2", "v_lshlrev_b32 v12, 6, v12", "v_mul_u32_u24 v13, 49152, v3", "v_add_u32 v12, v12, v13",
               "buffer_load_dword v14, v12, s[28:31], s35 offen sc1", f"s_add_u32 s35, s35, {4*49152}",
               "buffer_load_dword v14, v12, s[28:31], s35 offen sc1",
               "s_lshl_b32 s35, s14, 13", f"s_add_u32 s35, s35, {ST_OFF}", "s_lshl_b32 s38, s32, 11", "s_add_u32 s35, s35, s38",
               "v_lshlrev_b32 v12, 6, v7", "buffer_load_dword v14, v12, s[28:31], s35 offen sc1",
               "s_lshl_b32 s35, s14, 11", f"s_add_u32 s35, s35, {FL_OFF+FL_A}", "buffer_load_dword v14, v12, s[28:31], s35 offen sc1",
               "s_lshl_b32 s35, s14, 10", f"s_add_u32 s35, s35, {FL_OFF+FL_O}", "v_lshlrev_b32 v12, 6, v2",
               "buffer_load_dword v14, v12, s[28:31], s35 offen sc1",
               "s_lshl_b32 s35, s14, 8", f"s_add_u32 s35, s35, {FL_OFF+FL_H}", "buffer_load_dword v14, v9, s[28:31], s35 offen sc1"]
    nwo = 5 + 5 * 9 + 22
    wq = wq[:nwo] + tq + wq[nwo:]

    a.raw(".p2align 3")
    for blk in range(16):
        q = []
        fixed = {t: [] for t in range(4)}
        if blk + 2 < 16 and blk:
            fixed[0] += vloads(blk + 2)
        if blk + 1 < 16:
            fixed[3] += [lambda b=blk + 1: a.wait(ktok[b])]
        if blk + 3 < 16:
            fixed[3] += kloads(blk + 3)
        bq = bgq[blk]
        for tile in range(4):
            fq = fixed[tile]
            cnt = [0]
            def slots():
                cnt[0] += 1
                if tile == 3 and cnt[0] == 7 and blk + 1 < 16:
                    a.wait(vtok[blk + 1])
                src = fq if fq else bq if bq else wq if blk >= B_POLL else None
                if not src:
                    return
                x = src.pop(0)
                if x is None:
                    return
                emit(a, x)
                if cost(x) == 0 and src and src[0] is not None and cost(src[0]) == 1 and "m0" not in x:
                    emit(a, src.pop(0))
            att_half(a, blk, tile, slots, blk == 0 and tile == 0, blk == 15 and tile == 3)
            assert not fq
        assert not bq, (blk, bq)
        if blk in (3, 7, 11):
            stamp(a, f"b{blk}")
    a(pv(3, vreg(15) + 12, SB + 24))
    print("background items left after attention:", len(wq), file=sys.stderr)
    for x in wq:
        emit(a, x)
    stamp(a, "loop1")

    a.label("L_xchg")
    a(f"""
    s_mul_i32 s38, s32, 6144
    s_add_u32 s38, s38, {L_E}
    v_add_u32 v12, s38, v4
    s_xor_b32 s39, s32, 1
    s_mul_i32 s39, s39, 6144
    s_add_u32 s39, s39, {L_E}
    v_add_u32 v13, s39, v4
    s_cmp_eq_u32 s36, 0
    s_cbranch_scc0 L_x1
    """)
    for br in range(2):
        send, keep = (2, 0) if br == 0 else (0, 2)
        for t in range(2):
            for j in range(3):
                o = VO + 16 * (send + t) + 4 * j
                a(f"ds_write_b128 v12, v[{o}:{o+3}] offset:{3072*t + 1024*j}")
        if br == 0:
            a("s_branch L_x2")
            a.label("L_x1")
        else:
            for t in range(2):
                for r in range(12):
                    a(f"v_mov_b32 v{VO+16*t+r}, v{VO+32+16*t+r}")
    a.label("L_x2")
    a.wait(T["wo"])
    a("s_waitcnt lgkmcnt(0)\ns_barrier")
    for t in range(2):
        for j in range(3):
            x = a(f"ds_read_b128 v[{SA+16*t+4*j}:{SA+16*t+4*j+3}], v13 offset:{3072*t + 1024*j}")
    a(f"""
    v_lshrrev_b32 v12, 4, v7
    v_mul_u32_u24 v12, 20480, v12
    v_lshl_add_u32 v12, v2, 4, v12
    v_lshl_add_u32 v12, v8, 8, v12
    s_lshl_b32 s38, s33, 1
    s_add_u32 s38, s38, s37
    s_lshl_b32 s38, s38, 8
    s_add_u32 s38, s38, {FL_OFF+FL_O}
    s_lshl_b32 s39, s34, 1
    s_add_u32 s39, s39, s36
    s_lshl_b32 s39, s39, 2
    s_add_u32 s39, s39, s38
    v_mov_b32 v10, 0
    v_mov_b32 v11, 1
    s_waitcnt lgkmcnt(0)
    """)
    for t in range(2):
        o, s = VO + 16 * t, SA + 16 * t
        a(f"v_add_f32 v{o+8}, v{o+8}, v{s+8}")
        a(f"v_mov_b32 v{o+12}, v{o+8}\nv_mov_b32 v{o+13}, v{o+8}")
        for r in range(12):
            if r != 8:
                a(f"v_add_f32 v{o+r}, v{o+r}, v{s+r}")
        a(f"v_permlane32_swap_b32 v{o+12}, v{o+13}")
    for t in range(2):
        o = VO + 16 * t
        a(f"v_rcp_f32 v{o+13}, v{o+13}")
    P0 = SB
    for t in range(2):
        o = VO + 16 * t
        for r in range(12):
            a(f"v_mul_f32 v{o+r}, v{o+r}, v{o+13}")
        for j in range(4):
            a(f"v_cvt_pk_bf16_f32 v{P0+4*t+j}, v{o+2*j}, v{o+2*j+1}")
        for j in range(2):
            a(f"v_cvt_pk_bf16_f32 v{P0+8+2*t+j}, v{o+8+2*j}, v{o+9+2*j}")
    stores(a, [f"buffer_store_dwordx4 v[{P0}:{P0+3}], v12, s[28:31], s58 offen",
               f"buffer_store_dwordx4 v[{P0+4}:{P0+7}], v12, s[28:31], s58 offen offset:512",
               "s_mov_b32 exec_hi, 0",
               f"buffer_store_dwordx4 v[{P0+8}:{P0+11}], v12, s[28:31], s58 offen offset:1024",
               "s_mov_b64 exec, 1",
               "s_waitcnt vmcnt(0)",
               "buffer_store_dword v11, v10, s[28:31], s39 offen",
               "s_mov_b64 exec, -1"])
    stamp(a, "ostored")

    VX, VACC, VW, NW, VCS = 16, 96, 116, 10, 156
    a("""
    s_lshl_b32 s35, s53, 10
    v_add_u32 v12, s35, v4
    v_add_u32 v13, 51200, v12
    s_lshl_b32 s35, s53, 12
    s_sub_u32 s35, 4096, s35
    v_add_u32 v6, s35, v4
    v_add_u32 v7, 51200, v6
    """)
    wtok = {}
    def wread(i):
        s, t = divmod(i, 5)
        base = (12 if t < 4 else 6) + (s >= 10)
        off = (s % 10) * 5120 + (1024 * t if t < 4 else 0)
        d = VW + 4 * (i % NW)
        wtok[i] = a(f"ds_read_b128 v[{d}:{d+3}], v{base} offset:{off}")
    for i in range(NW - 1):
        wread(i)
    a("v_mov_b32 v168, 0x3f803f80\nv_mov_b32 v169, v168\nv_mov_b32 v170, v168\nv_mov_b32 v171, v168")
    def colsum(lo, hi):
        for s in range(lo, hi):
            for t in range(3):
                w, c = 12 * s + 4 * t, VCS + 4 * t
                a(f"v_mfma_f32_16x16x32_bf16 v[{c}:{c+3}], a[{w}:{w+3}], v[168:171], " + ("0" if s == 0 else f"v[{c}:{c+3}]"))
    colsum(0, 8)
    a(f"s_add_u32 s35, s52, {OF_OFF}")
    poll(a, "o", 9, "s38", "v_cmp_eq_u32 vcc, 0, v{v}", 16)
    stamp(a, "oflag")
    ot = []
    for s in range(20):
        ot.append(a(f"buffer_load_dwordx4 v[{VX+4*s}:{VX+4*s+3}], v4, s[28:31], s35 offen offset:{1024*(s&3)} sc1"))
        if s & 3 == 3 and s < 19:
            a("s_add_u32 s35, s35, 4096")
        if s == 11:
            break
    for s in range(20):
        for t in range(5):
            i = 5 * s + t
            w, c = VW + 4 * (i % NW), VACC + 4 * t
            if i == 0:
                a.wait(ot[0], wtok[0])
            a(f"v_mfma_f32_16x16x32_bf16 v[{c}:{c+3}], v[{w}:{w+3}], v[{VX+4*s}:{VX+4*s+3}], " + ("0" if s == 0 else f"v[{c}:{c+3}]"))
            if i < 99:
                a.wait(wtok[i + 1], ot[s + 1] if t == 4 else None)
            if i + NW - 1 < 100:
                wread(i + NW - 1)
            if t == 1 and len(ot) < 20:
                k = len(ot)
                ot.append(a(f"buffer_load_dwordx4 v[{VX+4*k}:{VX+4*k+3}], v4, s[28:31], s35 offen offset:{1024*(k&3)} sc1"))
                if k == 15:
                    a("s_add_u32 s35, s35, 4096")
    stamp(a, "womain")
    a(f"""
    s_lshl_b32 s35, s53, 9
    s_add_u32 s54, s59, s35
    s_lshl_b32 s35, s53, 11
    s_sub_u32 s55, s59, s35
    v_lshrrev_b32 v12, 1, v3
    v_and_b32 v13, 1, v3
    v_lshlrev_b32 v6, 4, v2
    v_lshl_add_u32 v6, v13, 3, v6
    v_lshl_add_u32 v7, v12, 8, v6
    s_lshl_b32 s35, s33, 2
    s_add_u32 s35, s35, s32
    s_lshl_b32 s56, s35, 10
    s_lshl_b32 s38, s34, 7
    s_add_u32 s56, s56, s38
    s_add_u32 s56, s56, {ST_OFF}
    s_lshl_b32 s38, s14, 8
    s_add_u32 s38, s38, {FL_OFF+FL_H}
    s_and_b32 s35, s35, 7
    s_lshl_b32 s35, s35, 5
    s_lshl_b32 s39, s34, 2
    s_add_u32 s39, s39, s35
    s_add_u32 s39, s39, s38
    """)
    H = VX
    for i in range(10):
        a(f"v_accvgpr_read_b32 v{H+12+i}, a{AXR+i}")
    a(f"v_mov_b32 v{H+24}, 0\nv_mov_b32 v{H+25}, 0")
    for t in range(5):
        c = VACC + 4 * t
        for r in range(2):
            x = H + 12 + 2 * t + r
            a(f"v_lshlrev_b32 v{H+26}, 16, v{x}\nv_and_b32 v{H+27}, 0xffff0000, v{x}")
            a(f"v_pk_add_f32 v[{c+2*r}:{c+2*r+1}], v[{c+2*r}:{c+2*r+1}], v[{H+26}:{H+27}]")
            a(f"v_cvt_pk_bf16_f32 v{H+2*t+r}, v{c+2*r}, v{c+2*r+1}")
    stores(a, [f"buffer_store_dwordx4 v[{H}:{H+3}], v4, s[28:31], s54 offen",
               f"buffer_store_dwordx4 v[{H+4}:{H+7}], v4, s[28:31], s54 offen offset:1024",
               f"buffer_store_dwordx2 v[{H+8}:{H+9}], v7, s[28:31], s55 offen offset:2048"])
    for i in range(10):
        a(f"v_dot2c_f32_bf16 v{H+24}, v{H+i}, v168\nv_dot2c_f32_bf16 v{H+25}, v{H+i}, v{H+i}")
    xreduce4(a, H + 24, H + 26)
    xreduce4(a, H + 25, H + 27)
    stores(a, ["s_mov_b64 exec, 0xffff",
               f"buffer_store_dwordx2 v[{H+24}:{H+25}], v5, s[28:31], s56 offen",
               "s_mov_b64 exec, 1",
               "s_waitcnt vmcnt(0)",
               "buffer_store_dword v11, v10, s[28:31], s39 offen",
               "s_mov_b64 exec, -1"])
    for i in range(10):
        a(f"v_accvgpr_write_b32 a{AXR+i}, v{H+i}")
    stamp(a, "hstored")
    colsum(8, 20)

    VF, NF, VC, VT_ = 16, 6, 40, 64
    VST, VMX, VK_ = 72, 88, 92
    VCS2, VPK = 100, 104
    VWD = 112
    wdreg = [VWD + 4 * i for i in range(11)] + [168 + 4 * i for i in range(22)]
    NWR = len(wdreg)
    NWL = 25
    order = [0, 4, 1, 5, 2, 6, 3, 7]
    a(f"""
    s_mul_i32 s40, s14, {8*20480}
    s_mul_i32 s41, s32, 5120
    s_add_u32 s40, s40, s41
    s_add_u32 s40, s40, {HF_OFF}
    s_add_u32 s41, s41, {L_E}
    v_add_u32 v13, {L_E}, v4
    s_lshl_b32 s35, s14, 13
    s_add_u32 s35, s35, {ST_OFF}
    v_lshlrev_b32 v12, 3, v2
    v_and_b32 v8, 1, v3
    v_lshl_add_u32 v12, v8, 10, v12
    v_lshrrev_b32 v8, 1, v3
    v_lshl_add_u32 v12, v8, 12, v12
    v_mul_u32_u24 v8, {4*49152}, v8
    v_add_u32 v8, v8, v6
    """)
    poll(a, "h", 9, "s38", "v_cmp_eq_u32 vcc, 0, v{v}", 64)
    stamp(a, "hflag")
    at = {}
    def a_dma(i):
        mt = order[i]
        def last():
            at[i] = a("buffer_load_dwordx4 v4, s[28:31], s42 offen sc1 lds")
        return [f"s_add_u32 s42, s40, {mt*20480}", f"s_add_u32 m0, s41, {(i%3)*20480}"] + \
               [f"buffer_load_dwordx4 v4, s[28:31], s42 offen offset:{1024*k} sc1 lds" for k in range(4)] + \
               ["s_add_u32 s42, s42, 4096", "s_add_u32 m0, m0, 4096", last]
    for x in a_dma(0):
        emit(a, x)
    VS = 168
    for j in range(2):
        for c in range(8):
            st = a(f"buffer_load_dwordx2 v[{VS+16*j+2*c}:{VS+16*j+2*c+1}], v12, s[28:31], s35 offen offset:{2048*j+128*c} sc1")
    for x in a_dma(1):
        emit(a, x)
    for i in range(4):
        a(f"v_mov_b32 v{VCS2+i}, v{VCS+8+i}")
    for i in range(4):
        a(f"v_permlane32_swap_b32 v{VCS+8+i}, v{VCS2+i}")
    a(f"""
    s_mul_i32 s43, s14, {8*49152}
    s_lshl_b32 s35, s57, 5
    s_add_u32 s43, s43, s35
    s_add_u32 s43, s43, {AF_OFF}
    s_lshl_b32 s38, s14, 11
    s_add_u32 s38, s38, {FL_OFF+FL_A}
    s_lshr_b32 s35, s15, 2
    s_lshl_b32 s35, s35, 7
    s_add_u32 s39, s38, s35
    s_and_b32 s35, s15, 3
    s_lshl_b32 s35, s35, 4
    s_add_u32 s39, s39, s35
    s_lshl_b32 s35, s32, 2
    s_add_u32 s39, s39, s35
    s_lshl_b32 s35, s32, 7
    s_add_u32 s38, s38, s35
    s_mov_b32 s44, {fbits(-LOG2E)}
    s_mul_i32 s45, s32, {12*40960}
    s_mul_i32 s35, s34, 5120
    s_add_u32 s45, s45, s35
    s_add_u32 s45, s45, {WD_OFF}
    s_lshl_b32 s35, s53, 10
    v_add_u32 v5, s35, v4
    s_lshl_b32 s35, s53, 12
    s_sub_u32 s35, 4096, s35
    v_add_u32 v6, s35, v4
    s_mul_i32 s46, s32, 25600
    """)
    a.wait(st)
    for j in range(2):
        b = VS + 16 * j
        for c in range(1, 8):
            a(f"v_pk_add_f32 v[{b}:{b+1}], v[{b}:{b+1}], v[{b+2*c}:{b+2*c+1}]")
        m, v, r = VST + 8 * j, VST + 8 * j + 1, VST + 8 * j + 2
        a(f"""
        v_mul_f32 v{m}, {fbits(1/640)}, v{b}
        v_mul_f32 v{v}, {fbits(1/640)}, v{b+1}
        v_fma_f32 v{v}, -v{m}, v{m}, v{v}
        v_max_f32 v{v}, 0, v{v}
        v_add_f32 v{v}, {fbits(1e-5)}, v{v}
        v_rsq_f32 v{r}, v{v}
        v_mov_b32 v{m+4}, v{m}
        v_mul_f32 v{r}, s44, v{r}
        v_mov_b32 v{v+4}, v{v}
        v_mov_b32 v{r+4}, v{r}
        v_permlane16_swap_b32 v{m}, v{m+4}
        v_permlane16_swap_b32 v{v}, v{v+4}
        v_permlane16_swap_b32 v{r}, v{r+4}
        """)

    def weave(lists):
        o = []
        for i in range(max(map(len, lists))):
            o += [l[i] for l in lists if i < len(l)]
        return o

    def act4(g, u, csg, csu, m, pk):
        o = [f"v_fma_f32 v{g+i}, -v{m}, v{csg+i}, v{g+i}" for i in range(4)]
        o += [f"v_fma_f32 v{u+i}, -v{m}, v{csu+i}, v{u+i}" for i in range(4)]
        o += weave([[f"v_mul_f32 v{VT_+i}, v{g+i}, v{m+2}", f"v_exp_f32 v{VT_+i}, v{VT_+i}", f"v_mul_f32 v{g+i}, v{g+i}, v{u+i}",
                     f"v_fma_f32 v{VT_+i}, v{VT_+i}, v{m+1}, v{m+1}", f"v_rcp_f32 v{VT_+i}, v{VT_+i}",
                     f"v_mul_f32 v{g+i}, v{g+i}, v{VT_+i}"] for i in range(4)])
        o += [f"v_cvt_pk_bf16_f32 v{pk}, v{g}, v{g+1}", f"v_cvt_pk_bf16_f32 v{pk+1}, v{g+2}, v{g+3}"]
        return o

    atok = {}
    def epilogue(i):
        p, c = i >> 1, VC + 12 * (i & 1)
        o = []
        if i % 2 == 0:
            for k in range(3):
                o += [f"v_mov_b32 v{VK_+k}, v{VST+4*p+k}", f"v_mov_b32 v{VK_+4+k}, v{VST+4*p+k}"]
            o += [f"v_mov_b32 v{VMX+k}, v{c+8+k}" for k in range(4)]
            o += [f"v_permlane32_swap_b32 v{VK_+k}, v{VK_+4+k}" for k in range(3)]
            o += act4(c, c + 4, VCS, VCS + 4, VK_, VPK)
        else:
            o += [f"v_permlane32_swap_b32 v{VMX+k}, v{c+8+k}" for k in range(4)]
            o += act4(c, c + 4, VCS, VCS + 4, VK_ + 4, VPK + 2)
            o += act4(VMX, c + 8, VCS + 8, VCS2, VST + 4 * p, VPK + 4)
            def st():
                atok[p] = stores(a, [f"buffer_store_dwordx2 v[{VPK}:{VPK+1}], v7, s[28:31], s43 offen",
                                     f"buffer_store_dwordx2 v[{VPK+2}:{VPK+3}], v7, s[28:31], s35 offen",
                                     f"buffer_store_dwordx2 v[{VPK+4}:{VPK+5}], v8, s[28:31], s43 offen offset:512"])
            o += [f"s_add_u32 s35, s43, {4*49152}", st, "s_add_u32 s43, s43, 49152"]
        return o

    def signal(p):
        def f():
            a.wait(atok[p])
            stores(a, ["s_mov_b64 exec, 1", f"buffer_store_dword v11, v10, s[28:31], s39 offen offset:{512*p}", "s_mov_b64 exec, -1"])
        return f

    wd_tok = {}
    def wd_items(lo, hi, dst):
        o = []
        for f in range(lo, hi):
            ks, t = divmod(f, 5)
            va, off = (5, 1024 * t) if t < 4 else (6, 0)
            d = dst(f)
            if d is not None and (t == 0 or f == lo):
                o.append(f"s_add_u32 s47, s45, {ks*40960}")
            if d is None:
                o += [f"s_add_u32 m0, s46, {(f-NWR)*1024}", f"s_add_u32 s47, s45, {ks*40960 + off}"]
                txt = f"buffer_load_dwordx4 v{va}, s[28:31], s47 offen sc1 lds"
            else:
                txt = f"buffer_load_dwordx4 {d}, v{va}, s[28:31], s47 offen offset:{off} sc1"
            def ld(f=f, txt=txt):
                wd_tok[f] = a(txt)
            o.append(ld)
        return o
    AWD = 0
    def wd_op(f):
        return f"v[{wdreg[f]}:{wdreg[f]+3}]" if f < NWR else f"a[{AWD+4*(f-NWR)}:{AWD+4*(f-NWR)+3}]"
    wdq = wd_items(0, NWR, wd_op) + wd_items(NWR, NWR + NWL, lambda f: None)
    AACT = 108
    NACT = 33

    rtok = {}
    def do_rd(i):
        mi, s = divmod(i, 20)
        if s == 0:
            a.wait(at[mi])
            a("s_barrier")
        d = VF + 4 * (i % NF)
        rtok[i] = a(f"ds_read_b128 v[{d}:{d+3}], v13 offset:{(mi%3)*20480 + s*1024}")
    AHEAD = NF - 1
    for i in range(AHEAD):
        do_rd(i)
    a.wait(T["wgu"], rtok[0])
    stamp(a, "gu0")
    mq = a_dma(2)
    for mi in range(8):
        c = VC + 12 * (mi & 1)
        ep = epilogue(mi - 1) if mi else []
        if mi >= 3 and mi % 2 == 1:
            mq.append(signal((mi - 3) // 2))
        for s in range(20):
            i = mi * 20 + s
            f = VF + 4 * (i % NF)
            for t in range(3):
                w = 12 * s + 4 * t
                a(f"v_mfma_f32_16x16x32_bf16 v[{c+4*t}:{c+4*t+3}], a[{w}:{w+3}], v[{f}:{f+3}], " + ("0" if s == 0 else f"v[{c+4*t}:{c+4*t+3}]"))
                budget = 2
                if t == 2 and i + 1 < 160:
                    a.wait(rtok[i + 1])
                if t == 0 and i + AHEAD < 160:
                    do_rd(i + AHEAD)
                    budget = 1
                    if (i + AHEAD) % 20 == 0 and mi + 2 < 8 and mi:
                        mq += a_dma(mi + 2)
                if t == 1:
                    src = mq if mq else wdq if (s % 2 == 0 or not ep) else None
                    if src:
                        while src and cost(src[0]) == 0:
                            emit(a, src.pop(0))
                        if src:
                            emit(a, src.pop(0))
                            budget = 1
                if s >= 2 or (s == 1 and t == 2):
                    gap(a, ep, budget)
        for x in ep:
            emit(a, x)
        if mi in (1, 3, 5):
            stamp(a, f"m{mi}")
    assert not mq
    print("down-weight items left after gate/up:", len(wdq), file=sys.stderr)
    for x in wdq:
        emit(a, x)
    stamp(a, "m7")

    a(f"""
    s_mul_i32 s40, s33, {4*49152}
    s_mul_i32 s35, s32, 12288
    s_add_u32 s40, s40, s35
    s_add_u32 s40, s40, {AF_OFF}
    v_add_u32 v12, s46, v4
    """)
    poll(a, "a0", 9, "s38", "v_cmp_eq_u32 vcc, 0, v{v}", 16)
    ft = {}
    def act_items(j):
        o = []
        for s in range(12):
            k = 12 * j + s
            d = AACT + 4 * (k % NACT)
            if s % 4 == 0:
                o.append(f"s_add_u32 s42, s40, {j*49152 + s*1024}")
            def ld(k=k, d=d, s=s):
                ft[k] = a(f"buffer_load_dwordx4 a[{d}:{d+3}], v4, s[28:31], s42 offen offset:{1024*(s&3)} sc1")
            o.append(ld)
        return o
    for x in act_items(0) + wd_items(NWR + NWL, 60, wd_op):
        emit(a, x)
    for f in range(NWR, NWR + NWL):
        lt = a(f"ds_read_b128 {wd_op(f)}, v12 offset:{1024*(f-NWR)}")
    for x in epilogue(7):
        emit(a, x)
    a("s_add_u32 s38, s38, 512")
    poll(a, "a1", 9, "s38", "v_cmp_eq_u32 vcc, 0, v{v}", 16)
    signal(3)()
    for x in act_items(1):
        emit(a, x)
    DC, DH, DR = 16, 56, 76
    RB = 4 * 5376
    a(f"""
    s_mul_i32 s35, s32, 5376
    s_add_u32 s35, s35, {L_E}
    v_mul_u32_u24 v12, 336, v2
    v_lshl_add_u32 v12, v3, 4, v12
    v_add_u32 v12, s35, v12
    s_lshl_b32 s41, s53, 6
    v_add_u32 v13, s41, v12
    s_lshl_b32 s41, s53, 8
    s_sub_u32 s41, 256, s41
    v_add_u32 v12, s41, v12
    v_mul_u32_u24 v5, 6554, v1
    v_lshrrev_b32 v5, 16, v5
    v_mul_u32_u24 v6, 10, v5
    v_sub_u32 v6, v1, v6
    v_min_u32 v5, 3, v5
    s_lshl_b32 s35, s32, 2
    v_add_u32 v5, s35, v5
    v_mul_u32_u24 v7, 336, v5
    v_lshl_add_u32 v7, v6, 5, v7
    v_add_u32 v7, {L_E}, v7
    v_mul_u32_u24 v8, 1280, v5
    v_lshl_add_u32 v8, v6, 4, v8
    v_mov_b32 v5, 0x7ff00000
    v_cmp_gt_u32 vcc, 40, v1
    v_cndmask_b32 v8, v5, v8, vcc
    s_mul_i32 s41, s33, {64*1280}
    s_mul_i32 s35, s34, 160
    s_add_u32 s41, s41, s35
    """)
    for i in range(10):
        a(f"v_accvgpr_read_b32 v{DR+i}, a{AXR+i}")
    for i in range(10):
        a(f"v_lshlrev_b32 v{DH+2*i}, 16, v{DR+i}\nv_and_b32 v{DH+2*i+1}, 0xffff0000, v{DR+i}")
    stamp(a, "dn0")

    def publish(j):
        c = DC + 20 * (j & 1)
        o = [f"s_cmp_eq_u32 s32, {j}\ns_cselect_b32 s35, 1.0, 0"]
        o += [f"v_fma_f32 v{c+i}, s35, v{DH+i}, v{c+i}" for i in range(20)]
        o += [f"ds_write_b128 v{13 if t < 4 else 12}, v[{c+4*t}:{c+4*t+3}] offset:{RB*(j&1) + (64*t if t < 4 else 0)}" for t in range(5)]
        o += ["s_waitcnt lgkmcnt(0)", "s_barrier"]
        o += [f"ds_read_b128 v[{DR+8*k+4*h}:{DR+8*k+4*h+3}], v7 offset:{RB*(j&1) + 5376*k + 16*h}" for k in range(4) for h in range(2)]
        o += ["s_waitcnt lgkmcnt(4)"]
        o += [f"v_add_f32 v{DR+i}, v{DR+i}, v{DR+8+i}" for i in range(8)]
        o += ["s_waitcnt lgkmcnt(0)"]
        o += [f"v_add_f32 v{DR+16+i}, v{DR+16+i}, v{DR+24+i}" for i in range(8)]
        o += [f"v_add_f32 v{DR+i}, v{DR+i}, v{DR+16+i}" for i in range(8)]
        o += [f"v_cvt_pk_bf16_f32 v{DR+8+i}, v{DR+2*i}, v{DR+2*i+1}" for i in range(4)]
        o += [f"buffer_store_dwordx4 v[{DR+8}:{DR+11}], v8, s[24:27], s41 offen", f"s_add_u32 s41, s41, {16*1280}"]
        return o

    a.wait(lt)
    a("s_barrier")
    for j in range(4):
        c = DC + 20 * (j & 1)
        ep = publish(j - 1) if j else []
        lq = []
        if j + 2 < 4:
            def pl(j=j):
                a("s_add_u32 s38, s38, 512")
                poll(a, f"a{j+2}", 9, "s38", "v_cmp_eq_u32 vcc, 0, v{v}", 16)
            lq = [pl] + act_items(j + 2)
        for s in range(12):
            k = 12 * j + s
            x = AACT + 4 * (k % NACT)
            for t in range(5):
                f = 5 * s + t
                if t == 0:
                    a.wait(ft[k], wd_tok[5 * s + 4] if j == 0 else None)
                a(f"v_mfma_f32_16x16x32_bf16 v[{c+4*t}:{c+4*t+3}], {wd_op(f)}, a[{x}:{x+3}], " + ("0" if s == 0 else f"v[{c+4*t}:{c+4*t+3}]"))
                budget = 2
                if s >= 3 and t in (1, 3) and lq:
                    while lq and cost(lq[0]) == 0:
                        emit(a, lq.pop(0))
                    emit(a, lq.pop(0))
                    budget = 1
                if s >= 1:
                    gap(a, ep, budget)
        assert not lq
        for x in ep:
            emit(a, x)
    stamp(a, "dn4")
    for x in publish(3):
        emit(a, x)
    end(a, n)
    for lab, lines, back in a.cold:
        a.label(lab)
        for l in lines:
            a(l)
        a(f"s_branch {back}")
    a.raw(".p2align 5")
    a.label("L_runs")
    pats = [[4 * i for i in range(8)], [4 * (i >> 1) + 16 * (i & 1) for i in range(8)]]
    for sm in range(5):
        row = []
        for i in range(8):
            m, p = divmod(4 * sm + (i >> 1), 5)
            row.append(40 * m + ([0, 8, 20, 28][p] + 4 * (i & 1) if p < 4 else 16 + 20 * (i & 1)))
        pats.append(row)
    for r in pats:
        a.raw(".long " + ", ".join(map(str, r)))
    return dict(name=n, vgpr=512, acc=256, lds=163840)


def build(kernels):
    body, infos = "", []
    for k in kernels:
        a = Asm()
        infos.append(k(a))
        body += a.text()
    s = open("cdna_kernels/%s.s.ref" % NAME).read().split("; Override launch")[0]
    for i in infos:
        s += f"; @launch kernel={i['name']} grid=(256,1,1) block=(256,1,1) lds={i['lds']}\n"
    s += '.amdgcn_target "amdgcn-amd-amdhsa--gfx950"\n.text\n' + body
    s += '.section .rodata,"a"\n'
    for i in infos:
        s += f""".p2align 6
.amdhsa_kernel {i['name']}
  .amdhsa_next_free_vgpr {i['vgpr']}
  .amdhsa_next_free_sgpr 102
  .amdhsa_accum_offset {i['acc']}
  .amdhsa_group_segment_fixed_size 0
  .amdhsa_kernarg_size 96
  .amdhsa_user_sgpr_count 2
  .amdhsa_user_sgpr_kernarg_segment_ptr 1
  .amdhsa_system_sgpr_workgroup_id_x 1
.end_amdhsa_kernel
"""
    return s


if __name__ == "__main__":
    OPT.update(sys.argv[2:])
    out = sys.argv[1] if len(sys.argv) > 1 else "v2.s"
    open(out, "w").write(build([k_qkv, k_main]))
```

```python
import sys, re
import gen2
from gen2 import *
def mk(name, karg, base, n):
    def k_probe(a):
        nm = "probe_kernel"
        begin(a, nm)
        a(f"s_load_dwordx2 s[4:5], s[0:1], {karg}\ns_waitcnt lgkmcnt(0)")
        srd(a, 8, 4, 0x10000000 if karg == 88 else 1900000)
        a(f"s_mul_i32 s12, s2, {n*128}\ns_add_u32 s12, s12, {base}\nv_mov_b32 v1, 0\ns_mov_b64 exec, 1")
        for i in range(n):
            a("buffer_load_dword v2, v1, s[8:11], s12 offen\ns_add_u32 s12, s12, 128\ns_waitcnt vmcnt(0)")
        end(a, nm)
        return dict(name=nm, vgpr=8, acc=8, lds=0)
    open(name, "w").write(build([k_probe, k_qkv, k_main]))
mk("p_none.s", 40, 0, 0)
mk("p_bx.s", 40, 0, 40)
mk("p_ws0.s", 88, 0x2000000, 40)
mk("p_wsend.s", 88, 0xF000000, 40)
mk("p_wsmid.s", 88, 0x8000000, 40)
mk("p_out.s", 72, 0, 40)
```

```python
import sys, re
import gen2
from gen2 import *
def mk(name, op, n):
    def k_probe(a):
        nm = "probe_kernel"
        begin(a, nm)
        a(f"s_load_dwordx2 s[4:5], s[0:1], 88\ns_waitcnt lgkmcnt(0)")
        srd(a, 8, 4, 0x10000000)
        a(f"s_mul_i32 s12, s2, {n*4096}\ns_add_u32 s12, s12, 0x2000000\nv_lshlrev_b32 v1, 4, v0\nv_mov_b32 v4, 0\nv_mov_b32 v5, 0\nv_mov_b32 v6, 0\nv_mov_b32 v7, 0")
        for i in range(n):
            a(op + "\ns_add_u32 s12, s12, 4096")
        a("s_waitcnt vmcnt(0)")
        stamp(a, "done")
        end(a, nm)
        return dict(name=nm, vgpr=8, acc=8, lds=0)
    open(name, "w").write(build([k_probe, k_qkv, k_main]))
ld = "buffer_load_dwordx4 v[4:7], v1, s[8:11], s12 offen"
st = "buffer_store_dwordx4 v[4:7], v1, s[8:11], s12 offen"
mk("q_none.s", ld, 0)
mk("q_ld16.s", ld, 16)
mk("q_ld48.s", ld, 48)
mk("q_st8sc1.s", st + " sc1", 8)
mk("q_st24sc1.s", st + " sc1", 24)
mk("q_st24.s", st, 24)
```

```python
import struct, sys, math
from asmlib import *

NAME = "sequential_preLN__grouped_kv_mqa__swiglu_ffn__prompt"
KV_OFF = 0x000000
FL_OFF = 0x040000
OF_OFF = 0x050000
HF_OFF = 0x2D0000
ST_OFF = 0x550000
AF_OFF = 0x570000
WD_OFF = 0xB70000
WS_END = WD_OFF + 0x1E0000
FL_XCC, FL_W, FL_O, FL_H, FL_A = 0, 0x1000, 0x2000, 0x6000, 0x8000
KVB = 5632
XB = 2048 * 640 * 2
LOG2E = 1.4426950408889634
SPIN = 200000
OPT = set()


def opt(name, default):
    for o in OPT:
        if o.startswith(name + "="):
            return int(o.split("=")[1])
    return default


def fbits(x):
    return "0x%08x" % struct.unpack("<I", struct.pack("<f", x))[0]


def srd_lines(d, base, size):
    return [f"s_mov_b32 s{d}, s{base}", f"s_and_b32 s{d+1}, s{base+1}, 0xffff", f"s_mov_b32 s{d+2}, {size}", f"s_mov_b32 s{d+3}, 0x20000"]


def srd(a, d, base, size):
    a("\n".join(srd_lines(d, base, size)))


def stamp(a, n):
    a.raw(f"; stamp {n}")


def emit(a, x):
    return x() if callable(x) else a(x)


def xreduce4(v, t):
    return [f"v_mov_b32 v{t}, v{v}", f"v_permlane16_swap_b32 v{v}, v{t}", f"v_add_f32 v{v}, v{v}, v{t}",
            f"v_mov_b32 v{t}, v{v}", f"v_permlane32_swap_b32 v{v}, v{t}", f"v_add_f32 v{v}, v{v}, v{t}"]


def weave(lists):
    o = []
    for i in range(max(map(len, lists))):
        o += [l[i] for l in lists if i < len(l)]
    return o


class F:
    def __init__(self, fn, c):
        self.fn, self.c = fn, c
    def __call__(self):
        return self.fn()


def cost(x):
    if callable(x):
        return x.c
    op = x.split()[0]
    if op in TRANS or op.startswith("buffer_") or op.startswith("ds_write"):
        return 2
    if op.startswith("s_"):
        return 0
    return 1


def gap(a, q, budget=2, scalar=1):
    while q and scalar > 0 and budget == 2 and cost(q[0]) == 0:
        emit(a, q.pop(0))
        scalar -= 1
    while q and budget > 0:
        c = max(cost(q[0]), 1)
        k = 0
        if c > budget:
            k = hoistable(q)
            if k is None:
                break
            c = 1
        emit(a, q.pop(k))
        budget -= c
    return budget


def hoistable(q, window=10):
    d, u = set(), set()
    for k, x in enumerate(q[:window]):
        if callable(x) or not x.startswith("v_"):
            return None
        i = Ins(x)
        if k and cost(x) == 1 and not (i.uses & d or i.defs & (d | u)):
            return k
        d |= i.defs
        u |= i.uses
    return None


def mf16(d, x, y, c):
    return f"v_mfma_f32_16x16x32_bf16 {d}, {x}, {y}, {c}"


def rows160_addr(d0, t):
    o = []
    for i in range(5):
        d = d0 + i
        o += [f"v_add_u32 v{t}, {64*i}, v1", f"v_mul_u32_u24 v{t+1}, 6554, v{t}", f"v_lshrrev_b32 v{t+1}, 16, v{t+1}",
              f"v_mul_u32_u24 v{t+2}, 10, v{t+1}", f"v_sub_u32 v{t}, v{t}, v{t+2}", f"v_and_b32 v{t+2}, 3, v{t+1}",
              f"v_bfe_u32 v{d}, v{t+1}, 2, 2", f"v_lshl_add_u32 v{t+2}, v{d}, 3, v{t+2}", f"v_lshrrev_b32 v{t+1}, 4, v{t+1}",
              f"v_lshl_add_u32 v{t+1}, v{t+1}, 2, v{t+2}", f"v_mul_u32_u24 v{t+1}, 1280, v{t+1}",
              f"v_lshl_add_u32 v{d}, v{t}, 4, v{t+1}"]
        if 0 < i < 4:
            o.append(f"v_subrev_u32 v{d}, {1024*i}, v{d}")
    return o


SA, SB, VO, VQ, VKV = 16, 48, 80, 144, 168
VIDX = 15
VA160 = 246
VGD, VGT = 251, 10
L_E = 102400
L_RING = 61440
L_DJ = 53248
AXR = 240


def q16(t):
    return VQ + 12 * (t >> 1) + 4 * (t & 1)


def q4(t):
    return VQ + 12 * (t >> 1) + 8 + 2 * (t & 1)


def kreg(n):
    return VKV + 26 * (n % 3)


def vreg(n):
    return VKV + 26 * (n % 3) + 10


def pv(t, v, s):
    o = VO + 16 * t
    return f"v_smfmac_f32_32x32x32_bf16 v[{o}:{o+15}], v[{v}:{v+3}], v[{s}:{s+7}], v{VIDX}"


def qk4(sn, k, t):
    return f"v_mfma_f32_32x32x4bf16_1k v[{sn}:{sn+31}], v[{k+8}:{k+9}], v[{q4(t)}:{q4(t)+1}], 0"


def qk16(sn, k, t, hi):
    d = sn + 16 * hi
    return f"v_mfma_f32_32x32x16_bf16 v[{d}:{d+15}], v[{k+4*hi}:{k+4*hi+3}], v[{q16(t)}:{q16(t)+3}], v[{d}:{d+15}]"


def att_half(a, blk, tile, sl):
    first, last = (blk, tile) == (0, 0), (blk, tile) == (15, 3)
    sc, sn = (SA, SB) if tile % 2 == 0 else (SB, SA)
    nt, nb = (tile + 1) & 3, blk + (tile == 3)
    pt, pb = (tile - 1) & 3, blk - (tile == 0)
    def E(lo, hi):
        for i in range(lo, hi):
            a(f"v_exp_f32 v{sc+i}, v{sc+i}")
    def M(t, k):
        if t is not None:
            a(t)
        for x in sl.pop((tile, k), []):
            emit(a, x)
    v = vreg(blk)
    E(0, 2)
    M(None if first else pv(pt, vreg(pb) + 12, sn + 24), 0)
    E(2, 5)
    M(None if last else qk4(sn, kreg(nb), nt), None)
    E(5, 13)
    M(pv(tile, v, sc), 1)
    E(13, 18)
    M(pv(tile, v + 4, sc + 8), 2)
    E(18, 21)
    M(None if last else qk16(sn, kreg(nb), nt, 0), 3)
    E(21, 24)
    M(None if last else qk16(sn, kreg(nb), nt, 1), 4)
    E(24, 28)
    M(pv(tile, v + 8, sc + 16), 5)
    E(28, 32)


def poll(a, name, load, cmp, first=None, mask=None):
    def test():
        a(cmp)
        if mask is not None:
            a(f"s_and_b32 vcc_lo, vcc_lo, {hex(mask & 0xffffffff)}\ns_and_b32 vcc_hi, vcc_hi, {hex(mask >> 32)}")
        a("s_cmp_eq_u64 vcc, 0")
    def spin():
        a(f"s_mov_b32 s60, {SPIN}")
        a.label(f"L_{name}_spin")
        vm = a.vm
        a(load)
        a.vm = vm
        a("s_sub_u32 s60, s60, 1\ns_waitcnt vmcnt(0)")
        test()
        a(f"s_cbranch_scc1 L_{name}_ok\ns_cmp_lg_u32 s60, 0\ns_cbranch_scc1 L_{name}_spin")
    if first is None:
        spin()
    else:
        a.wait(first)
        test()
        a(f"s_cbranch_scc0 L_{name}_slow")
        def cold():
            a.label(f"L_{name}_slow")
            spin()
            a(f"s_branch L_{name}_ok")
        a.cold.append(cold)
    a.label(f"L_{name}_ok")


_uid = [0]


def dual(a, lines, local):
    wt = [l + " sc1" if l.startswith("buffer_store") else l for l in lines]
    tok = None
    if not local:
        for l in wt:
            tok = a(l) or tok
        return tok
    _uid[0] += 1
    u = _uid[0]
    a(f"s_cmp_eq_u32 s61, 0\ns_cbranch_scc1 L_st{u}_g")
    for l in lines:
        tok = a(l) or tok
    a.label(f"L_st{u}_j")
    def cold():
        a.label(f"L_st{u}_g")
        for l in wt:
            a(l)
        a(f"s_branch L_st{u}_j")
    a.cold.append(cold)
    return tok


def flag(a, soff, off=0):
    return dual(a, ["s_mov_b64 exec, 1", f"buffer_store_dword v0, off, s[28:31], {soff} offset:{off}", "s_mov_b64 exec, -1"], True)


def kernel(a):
    n = NAME + "_kernel"
    LOC_O, LOC_H, LOC_A = "lo" in OPT, "lh" in OPT, "la" in OPT
    a.cold = []
    T = {}
    def tk(name, text):
        def f():
            T[name] = a(text)
        return F(f, cost(text))
    def wt(*names):
        return F(lambda: a.wait(*[T[x] for x in names]), 0)
    a.raw(".p2align 8")
    a.raw(f".globl {n}")
    a.raw(f".type {n},@function")
    a.label(n)
    a("s_cmp_ge_u32 s2, 256\ns_cbranch_scc1 L_end")
    a("s_load_dwordx8 s[4:11], s[0:1], 0\ns_load_dwordx4 s[56:59], s[0:1], 80\ns_load_dwordx8 s[44:51], s[0:1], 48\ns_load_dwordx2 s[52:53], s[0:1], 32")
    a("""
    s_getpc_b64 s[20:21]
    v_lshrrev_b32 v1, 6, v0
    s_and_b32 s33, s2, 7
    s_lshr_b32 s35, s2, 3
    v_readfirstlane_b32 s32, v1
    v_and_b32 v1, 63, v0
    s_lshr_b32 s34, s35, 3
    s_lshl_b32 s33, s33, 2
    s_add_u32 s33, s33, s34
    s_and_b32 s34, s35, 7
    s_and_b32 s15, s35, 15
    s_lshr_b32 s14, s33, 1
    v_and_b32 v2, 15, v1
    v_lshrrev_b32 v3, 4, v1
    """)
    a("s_lshl_b32 s38, s35, 2\ns_add_u32 s38, s38, s32\ns_lshl_b32 s39, s38, 9\nv_lshl_add_u32 v20, v3, 7, s39")
    a.raw("    v_min_u32 v20, L_code_end-" + n + "-128, v20")
    a("global_load_dword v21, v20, s[20:21]")

    VX, VACC, VC = 64, 40, 60
    VT, VXA, VXR, VRS = 10, 32, 36, 144
    L_KW, L_W1 = 81920, 110592
    for g in range(4):
        a(f"v_add_u32 v22, {4*g}, v3\nv_xor_b32 v23, v22, v2\nv_mul_u32_u24 v22, 1280, v22\nv_lshl_add_u32 v{VXA+g}, v23, 4, v22")
        if g:
            a(f"v_subrev_u32 v{VXA+g}, {1024*g}, v{VXA+g}")
    a("""
    s_lshl_b32 s35, s33, 2
    s_add_u32 s35, s35, s32
    s_mul_i32 s54, s35, 20480
    s_mov_b32 s36, s54
    s_mul_i32 s39, s32, 20480
    s_mov_b32 m0, s39
    v_lshlrev_b32 v4, 4, v1
    v_min_u32 v22, 49, v1
    v_lshlrev_b32 v22, 7, v22
    s_mul_i32 s38, s38, 6400
    s_waitcnt lgkmcnt(0)
    """)
    srd(a, 16, 4, XB)
    srd(a, 20, 6, 640 * 640 * 2)
    xt = []
    for j in range(5):
        for g in range(4):
            t = a(f"buffer_load_dwordx4 v{VXA+g}, s[16:19], s36 offen offset:{1024*g} lds")
        xt.append(t)
        if j < 4:
            a("s_add_u32 s36, s36, 256\ns_add_u32 m0, m0, 4096")
        if j == 0 and "nowt" not in OPT:
            a("buffer_load_dword v21, v22, s[20:23], s38 offen")
    a("s_bitcmp1_b32 s34, 1\ns_cselect_b32 s12, s10, s8\ns_cselect_b32 s13, s11, s9")
    srd(a, 24, 12, 25600)
    a("s_cmp_ge_u32 s34, 4\ns_cselect_b32 s26, 0, s26")
    a(f"s_mul_i32 s36, s32, 7168\ns_add_u32 m0, s36, {L_KW}")
    for i in range(4):
        a(f"buffer_load_dwordx4 v4, s[24:27], s36 offen offset:{1024*i} lds")
    a("s_add_u32 s36, s36, 4096\ns_add_u32 m0, m0, 4096")
    for i in range(3):
        a(f"buffer_load_dwordx4 v4, s[24:27], s36 offen offset:{1024*i} lds")
    srd(a, 28, 58, WS_END)
    a(f"""
    s_lshl_b32 s38, s33, 2
    s_add_u32 s38, s38, s34
    s_lshl_b32 s38, s38, 9
    s_add_u32 s38, s38, {FL_OFF}
    s_cmp_ge_u32 s34, 4
    s_cselect_b32 s38, {WS_END}, s38
    s_cmp_lg_u32 s32, 0
    s_cselect_b32 s38, {WS_END}, s38
    v_lshlrev_b32 v5, 3, v1
    v_mov_b32 v22, 0
    v_mov_b32 v23, 0
    buffer_store_dwordx2 v[22:23], v5, s[28:31], s38 offen sc1
    """)
    a("\n".join(rows160_addr(VA160, 24)))
    a(f"s_mul_i32 s36, s34, 160\ns_mul_i32 s37, s32, 40960\ns_add_u32 s55, s36, s37\ns_mov_b32 s36, s55\ns_mul_i32 s37, s32, 5120\ns_add_u32 s37, s37, {L_W1}")

    def w_group(g):
        o = [f"s_add_u32 m0, s37, {20480*g}" if g < 2 else f"s_add_u32 m0, s39, {5120*(g-2)}"]
        o += [f"buffer_load_dwordx4 v{VA160+i}, s[20:23], s36 offen offset:{1024*i} lds" for i in range(4)]
        return o + ["s_add_u32 m0, m0, 4096", tk(f"w{g}", f"buffer_load_dwordx4 v{VA160+4}, s[20:23], s36 offen lds"),
                    f"s_add_u32 s36, s36, {4*40960}"]
    for x in w_group(0):
        emit(a, x)
    for sp in range(4):
        a(f"v_add_u32 v24, {4*sp}, v3\nv_xor_b32 v24, v24, v2\nv_lshlrev_b32 v24, 4, v24\nv_lshl_add_u32 v24, v2, 8, v24\nv_add_u32 v{VXR+sp}, s39, v24")
    a("s_mul_i32 s38, s34, 10\nv_lshrrev_b32 v24, 1, v3\nv_add_u32 v24, s38, v24\nv_and_b32 v25, 1, v3\nv_lshlrev_b32 v25, 3, v25\nv_lshl_add_u32 v25, v2, 8, v25\nv_add_u32 v25, s39, v25")
    for t in range(5):
        a(f"v_add_u32 v26, {2*t}, v24\nv_lshrrev_b32 v27, 4, v26\nv_and_b32 v26, 15, v26\nv_xor_b32 v26, v26, v2\nv_lshl_add_u32 v26, v26, 4, v25\nv_lshl_add_u32 v{VRS+t}, v27, 12, v26")
    a(f"""
    v_lshrrev_b32 v24, 2, v1
    v_mul_u32_u24 v24, 160, v24
    v_and_b32 v{VT}, 3, v1
    v_lshl_add_u32 v{VT}, v{VT}, 3, v24
    v_add_u32 v{VT+1}, 40960, v{VT}
    v_add_u32 v{VT+2}, {L_W1}, v{VT}
    v_mov_b32 v14, 0
    v_mov_b32 v15, 0
    v_mov_b32 v16, 0
    v_mov_b32 v17, 0
    v_mov_b32 v18, 0x3f803f80
    """)
    stamp(a, "issued")
    rt = {}
    def xread(j):
        a.wait(xt[j])
        for sp in range(4):
            x = VX + 16 * j + 4 * sp
            rt[j] = a(f"ds_read_b128 v[{x}:{x+3}], v{VXR+sp} offset:{4096*j}")
    xread(0)
    for j in range(5):
        if j < 4:
            xread(j + 1)
        if j == 3:
            for t in range(5):
                rs = a(f"ds_read_b64 a[{AXR+2*t}:{AXR+2*t+1}], v{VRS+t}")
        if j == 1:
            for x in w_group(1):
                emit(a, x)
        a.wait(rt[j])
        for r in range(16):
            x = VX + 16 * j + r
            a(f"v_dot2c_f32_bf16 v{14 + (r & 1)}, v{x}, v18\nv_dot2c_f32_bf16 v{16 + (r & 1)}, v{x}, v{x}")
    stamp(a, "xdone")
    a.wait(rs)
    for x in w_group(2):
        emit(a, x)
    a("v_add_f32 v14, v14, v15\nv_add_f32 v16, v16, v17")
    a("\n".join(weave([xreduce4(14, 15), xreduce4(16, 17)])))
    a(f"""
    v_mul_f32 v14, {fbits(1/640)}, v14
    v_mul_f32 v16, {fbits(1/640)}, v16
    v_fma_f32 v16, -v14, v14, v16
    v_max_f32 v16, 0, v16
    v_add_f32 v16, {fbits(1e-5)}, v16
    v_rsq_f32 v16, v16
    v_mul_f32_e64 v14, -v14, v16
    v_mov_b32 v17, v16
    v_mov_b32 v15, v14
    """)
    for s in range(20):
        for r in range(4):
            x, t = VX + 4 * s + r, 20 + 2 * r
            a(f"v_lshlrev_b32 v{t}, 16, v{x}\nv_and_b32 v{t+1}, 0xffff0000, v{x}")
        for r in range(4):
            t = 20 + 2 * r
            a(f"v_pk_fma_f32 v[{t}:{t+1}], v[{t}:{t+1}], v[16:17], v[14:15]")
        for r in range(4):
            x, t = VX + 4 * s + r, 20 + 2 * r
            a(f"v_cvt_pk_bf16_f32 v{x}, v{t}, v{t+1}")
        if s in (6, 13):
            for x in w_group(3 if s == 6 else 4):
                emit(a, x)
        if s == 15:
            a.wait(T["w0"])
            a(f"""
            s_barrier
            v_bfe_u32 v28, v1, 2, 2
            v_lshl_add_u32 v28, v3, 3, v28
            v_mul_u32_u24 v28, 40, v28
            v_and_b32 v29, 3, v1
            v_lshlrev_b32 v29, 3, v29
            s_bitcmp1_b32 s34, 0
            s_cselect_b32 s38, 0, -1
            s_cselect_b32 s40, 32, 0
            v_and_b32 v29, s38, v29
            s_add_u32 s40, s40, {L_KW}
            v_add3_u32 v28, v28, v29, s40
            """)
        if s >= 15:
            for k in range(4 * (s - 15), 4 * (s - 14)):
                for h in range(2):
                    kr = a(f"ds_read_b64_tr_b16 a[{64+4*k+2*h}:{64+4*k+2*h+1}], v28 offset:{k*1280 + 160*h}")
    stamp(a, "normed")

    def wreads(s):
        if s < 8:
            base, off = VT + 2, s * 5120
        else:
            o = (s & 3) * 20480 + ((s >> 2) - 2) * 5120
            base, off = (VT, o) if o < 40960 else (VT + 1, o - 40960)
        b = 20 * (s % 3)
        return [tk(("q", s, t), f"ds_read_b64_tr_b16 a[{b+4*t+2*h}:{b+4*t+2*h+1}], v{base} offset:{off + 2560*h + 32*t}")
                for t in range(5) for h in range(2)]
    rq = []
    for s in range(20):
        if s % 4 == 0 and s:
            if s < 16:
                rq.append(F(lambda g=s // 4: (a.wait(T[f"w{g}"]), a("s_barrier")), 0))
            else:
                def last_sync():
                    a("s_waitcnt vmcnt(0)\ns_barrier")
                    a("s_mov_b64 exec, 1\nbuffer_atomic_add v0, off, s[24:27], s41 sc1\ns_mov_b64 exec, -1")
                rq.append(F(last_sync, 0))
        rq += wreads(s)
    a(f"""
    s_mul_i32 s36, s33, {KVB}
    s_add_u32 s36, s36, {KV_OFF}
    v_lshrrev_b32 v22, 1, v3
    v_and_b32 v23, 1, v3
    s_lshl_b32 s37, s32, 4
    v_add_u32 v24, s37, v2
    v_mov_b32 v0, 1
    """)
    a.wait(kr)
    for _ in range(12):
        rq.pop(0)()
    vm_before = a.vm
    a("s_cmp_ge_u32 s34, 4\ns_cbranch_scc1 L_q\ns_bitcmp1_b32 s34, 1\ns_cbranch_scc1 L_v")
    for isv in range(2):
        ad = ["""v_lshrrev_b32 v25, 5, v24
            v_and_b32 v26, 31, v24
            v_lshl_add_u32 v26, v22, 5, v26
            v_lshl_add_u32 v26, v25, 6, v26
            v_lshlrev_b32 v26, 4, v26
            v_lshl_add_u32 v26, v23, 3, v26
            v_lshlrev_b32 v24, 3, v24
            v_add_u32 v24, 2048, v24""",
              """v_mul_u32_u24 v24, 384, v22
            v_lshl_add_u32 v24, v23, 3, v24
            v_lshl_add_u32 v24, v2, 4, v24"""][isv].split("\n")
        for s in range(20):
            c = f"v[{VargC(VC, s)}:{VargC(VC, s)+3}]"
            w, x = f"a[{64+4*s}:{67+4*s}]", f"v[{VX+4*s}:{VX+4*s+3}]"
            a(mf16(c, x if isv else w, w if isv else x, "0" if s < 2 else c))
            if ad:
                a(ad.pop(0))
        if not isv:
            a("""
            s_bitcmp1_b32 s34, 0
            s_cselect_b64 vcc, -1, 0
            s_cselect_b64 s[40:41], 0xffff, -1
            v_cndmask_b32 v24, v26, v24, vcc
            s_mov_b64 s[42:43], 0
            s_branch L_kvj
            """)
            a.label("L_v")
        else:
            a("""
            s_mul_i32 s37, s32, 768
            s_add_u32 s37, s37, 2560
            s_bitcmp1_b32 s34, 0
            s_cselect_b32 s38, 256, 0
            s_cselect_b32 s40, 0x00ff00ff, -1
            s_cselect_b32 s42, 0x00f000f0, 0
            s_mov_b32 s41, s40
            s_mov_b32 s43, s42
            s_add_u32 s37, s37, s38
            v_add_u32 v24, s37, v24
            """)
    a.label("L_kvj")
    a("v_cmp_eq_u32 vcc, 4, v2\nv_cndmask_b32 v25, 0, v18, vcc")
    for r in range(4):
        a(f"v_add_f32 v{VC+r}, v{VC+r}, v{28+r}")
    a(f"v_cvt_pk_bf16_f32 v{VC}, v{VC}, v{VC+1}\nv_cvt_pk_bf16_f32 v{VC+1}, v{VC+2}, v{VC+3}")
    a(f"v_cndmask_b32 v{VC}, v{VC}, v25, s[42:43]\nv_cndmask_b32 v{VC+1}, v{VC+1}, v25, s[42:43]")
    a(f"s_mov_b64 exec, s[40:41]\nbuffer_store_dwordx2 v[{VC}:{VC+1}], v24, s[28:31], s36 offen sc1\ns_mov_b64 exec, -1")
    a.label("L_q")
    a.vm = vm_before
    srd(a, 24, 56, 256)
    a("s_lshl_b32 s41, s34, 6\ns_cmp_lg_u32 s32, 0\ns_cselect_b32 s41, 256, s41")
    stamp(a, "kvdone")
    a.wait(T["q", 0, 0])
    for s in range(20):
        b = 20 * (s % 3)
        for t in range(5):
            c = f"v[{VACC+4*t}:{VACC+4*t+3}]"
            a(mf16(c, f"a[{b+4*t}:{b+4*t+3}]", f"v[{VX+4*s}:{VX+4*s+3}]", "0" if s == 0 else c))
            i = 5 * s + t + 1
            if i < 100:
                a.wait(T["q", i // 5, i % 5])
            k = 0
            while rq and k < 2:
                x = rq.pop(0)
                x()
                k += x.c
    stamp(a, "mainend")
    a(f"""
    v_lshlrev_b32 v9, 2, v1
    v_and_b32 v7, 31, v1
    v_lshrrev_b32 v8, 5, v1
    s_and_b32 s36, s32, 1
    s_lshr_b32 s37, s32, 1
    s_mov_b32 s38, {fbits(LOG2E / math.sqrt(20))}
    s_mul_i32 s35, s32, {16*168}
    s_add_u32 s35, s35, {L_KW}
    v_mul_u32_u24 v20, 168, v2
    v_lshl_add_u32 v20, v3, 3, v20
    v_add_u32 v20, s35, v20
    v_lshlrev_b32 v19, 6, v3
    """)
    T["s1"] = a("buffer_load_dword v14, v19, s[24:27], 0 offen sc1")
    for t in range(5):
        c = VACC + 4 * t
        for r in range(4):
            a(f"v_mul_f32 v{c+r}, s38, v{c+r}")
        a(f"v_cvt_pk_bf16_f32 v{c}, v{c}, v{c+1}\nv_cvt_pk_bf16_f32 v{c+1}, v{c+2}, v{c+3}")
        a(f"ds_write_b64 v20, v[{c}:{c+1}] offset:{32*t}")
    a(f"""
    s_mul_i32 s35, s37, {32*168}
    s_add_u32 s35, s35, {L_KW}
    s_mul_i32 s38, s36, 80
    s_sub_u32 s40, 80, s38
    v_mul_u32_u24 v21, 168, v7
    v_add_u32 v21, s35, v21
    v_add_u32 v23, s38, v21
    v_add_u32 v21, s40, v21
    v_lshl_add_u32 v22, v8, 4, v21
    v_lshl_add_u32 v24, v8, 4, v23
    v_bfe_u32 v10, v1, 2, 1
    v_bfe_u32 v11, v1, 3, 1
    v_and_b32 v6, 3, v1
    v_lshl_add_u32 v6, v10, 3, v6
    v_lshl_add_u32 v6, v11, 2, v6
    v_min_u32 v10, 21, v7
    v_cmp_gt_u32 vcc, 16, v7
    v_cndmask_b32 v6, v10, v6, vcc
    v_lshlrev_b32 v6, 4, v6
    v_mul_u32_u24 v10, 384, v8
    v_add_u32 v6, v6, v10
    v_add_u32 v6, 2560, v6
    s_mul_i32 s40, s36, {16*KVB}
    s_add_u32 s40, s40, {KV_OFF}
    s_mov_b32 s41, s40
    v_mov_b32 v{VIDX}, 0xdddddddd
    s_cmp_lg_u32 s32, 0
    s_cbranch_scc1 L_s1_ok
    """)
    poll(a, "s1", "buffer_load_dword v14, v19, s[24:27], 0 offen sc1", "v_cmp_ne_u32 vcc, 32, v14", T["s1"])
    a("s_waitcnt lgkmcnt(0)\ns_barrier")
    stamp(a, "s1")

    def kloads(b):
        k = kreg(b)
        return [f"buffer_load_dwordx4 v[{k}:{k+3}], v4, s[28:31], s40 offen sc1",
                f"buffer_load_dwordx4 v[{k+4}:{k+7}], v4, s[28:31], s40 offen offset:1024 sc1",
                tk(("k", b), f"buffer_load_dwordx2 v[{k+8}:{k+9}], v5, s[28:31], s40 offen offset:2048 sc1")]

    def vloads(b):
        v = vreg(b)
        return [tk(("v", b), f"buffer_load_dwordx4 v[{v+4*j}:{v+4*j+3}], v6, s[28:31], s41 offen offset:{768*j} sc1") for j in range(4)]
    KINC, VINC = f"s_add_u32 s40, s40, {KVB}", f"s_add_u32 s41, s41, {KVB}"
    for x in kloads(0) + vloads(0) + [KINC, VINC]:
        emit(a, x)
    for p in range(2):
        a(f"""
        ds_read2_b64 v[{VQ+12*p}:{VQ+12*p+3}], v{22+2*p} offset0:0 offset1:1
        ds_read2_b64 v[{VQ+12*p+4}:{VQ+12*p+7}], v{22+2*p} offset0:5 offset1:6
        ds_read2_b64 v[{VQ+12*p+8}:{VQ+12*p+11}], v{21+2*p} offset0:4 offset1:9
        """)
    for x in kloads(1) + vloads(1) + [KINC, VINC]:
        emit(a, x)
    for i in range(64):
        a(f"v_mov_b32 v{VO+i}, 0")
    for i in range(3):
        a(f"""
        v_add_u32 v26, {64*i}, v1
        v_mul_u32_u24 v27, 5462, v26
        v_lshrrev_b32 v27, 16, v27
        v_mul_u32_u24 v28, 12, v27
        v_sub_u32 v26, v26, v28
        v_mul_u32_u24 v27, 3072, v27
        v_lshl_add_u32 v{VGD+i}, v26, 4, v27
        """)
        if i:
            a(f"v_subrev_u32 v{VGD+i}, {1024*i}, v{VGD+i}")
    a(f"""
    s_cmp_ge_u32 s32, 2
    s_cselect_b32 s12, s46, s44
    s_cselect_b32 s13, s47, s45
    s_mul_i32 s42, s15, 192
    s_mul_i32 s35, s36, {16*3072}
    s_add_u32 s42, s42, s35
    s_mul_i32 s43, s32, 3072
    s_add_u32 s43, s43, {L_RING}
    v_bfe_u32 v26, v1, 2, 2
    v_lshl_add_u32 v26, v3, 3, v26
    v_and_b32 v27, 3, v1
    v_mul_u32_u24 v28, 192, v26
    v_lshl_add_u32 v28, v27, 3, v28
    s_mul_i32 s35, s32, 48
    s_add_u32 s35, s35, {L_RING}
    v_add_u32 v{VGT}, s35, v28
    v_lshrrev_b32 v28, 1, v27
    v_mul_u32_u24 v28, {6144-16}, v28
    v_add_u32 v{VGT+1}, v{VGT}, v28
    v_add_u32 v{VGT+2}, 49152, v{VGT}
    v_add_u32 v{VGT+3}, 49152, v{VGT+1}
    v_lshlrev_b32 v255, 6, v26
    v_lshl_add_u32 v255, v27, 3, v255
    s_lshl_b32 s39, s32, 11
    s_add_u32 s39, s39, {L_DJ}
    v_add_u32 v255, s39, v255
    v_lshrrev_b32 v254, 2, v1
    v_mul_u32_u24 v254, 1280, v254
    v_lshl_add_u32 v254, v27, 4, v254
    """)
    srd(a, 16, 12, 640 * 1536 * 2)
    srd(a, 20, 48, 1536 * 640 * 2)
    a("s_waitcnt lgkmcnt(0)")
    a.wait(T["k", 0])
    a(qk4(SA, kreg(0), 0))
    for x in kloads(2) + vloads(2) + [KINC, VINC]:
        emit(a, x)
    a(f"""
    s_mul_i32 s8, s2, 13108
    s_lshr_b32 s8, s8, 16
    s_mul_i32 s9, s8, 5
    s_sub_u32 s9, s2, s9
    s_mul_i32 s8, s8, 40960
    s_lshl_b32 s9, s9, 8
    s_add_u32 s8, s8, s9
    s_lshl_b32 s9, s32, 6
    s_add_u32 s8, s8, s9
    s_add_u32 s9, s8, {16*1280 - 1024}
    s_mov_b32 m0, s39
    """)
    a(qk16(SA, kreg(0), 0, 0))
    a(qk16(SA, kreg(0), 0, 1))
    a(f"""
    s_getreg_b32 s10, hwreg(HW_REG_XCC_ID, 0, 4)
    s_add_u32 s10, s10, 1
    s_lshl_b32 s11, s14, 8
    s_add_u32 s11, s11, {FL_OFF + FL_XCC}
    s_lshl_b32 s35, s15, 2
    s_add_u32 s35, s35, s11
    v_mov_b32 v14, s10
    """)
    a("buffer_load_dwordx4 v254, s[20:23], s8 offen lds")
    T["dj"] = a("buffer_load_dwordx4 v254, s[20:23], s9 offen offset:1024 lds")
    a("s_mov_b64 exec, 1\nbuffer_store_dword v14, off, s[28:31], s35 sc1\ns_mov_b64 exec, -1")
    a.wait(T["v", 0])
    stamp(a, "loop0")

    FREE = [(t, k) for t in range(4) for k in range(6)]
    PVS = (0, 1, 2, 5)
    LAG = 3
    def gslot(s):
        return ((s + 4) % 8) * 12288
    a.raw(".p2align 3")
    for blk in range(16):
        sl = {}
        def put(pos, items):
            sl.setdefault(pos, []).extend(items)
        def spread(items, start, pvonly=False):
            i = FREE.index(start)
            for it in items:
                while FREE[i] in sl or (pvonly and FREE[i][1] not in PVS):
                    i += 1
                put(FREE[i], it if isinstance(it, list) else [it])
            return FREE[i]
        if 1 <= blk <= 13:
            put((0, 0), vloads(blk + 2))
            put((0, 3), [VINC])
        if blk < 15:
            put((3, 0), [wt(("k", blk + 1))])
            put((3, 5), [wt(("v", blk + 1))])
        if blk <= 12:
            put((3, 1), kloads(blk + 3))
            put((3, 3), [KINC])
        if 1 <= blk <= 13:
            names = [("g", 2 * (blk - LAG) + 1)] if LAG <= blk < 10 + LAG else []
            if blk == 6:
                names.append("djst")
            def sync(names=names):
                a.wait(("lg", a.lg), *[T[x] for x in names])
                a("s_barrier")
            put((0, 1), [F(sync, 0)])
        if blk < 10:
            for h in range(2):
                s = 2 * blk + h
                put((1 + h, 0), [f"s_add_u32 m0, s43, {gslot(s)}"] + ([f"s_add_u32 s42, s42, 98304"] if s else []))
                put((1 + h, 1), [tk(("g", s), f"buffer_load_dwordx4 v{VGD+i}, s[16:19], s42 offen offset:{1024*i} lds") for i in range(3)])
        wog = {10: [0], 11: [1], 12: [2], 13: [3, 4]}.get(blk, [])
        for i, g in enumerate(wog):
            tl = 1 + i
            put((tl, 0), [f"s_add_u32 m0, s39, {20480*g}"])
            put((tl, 1), [f"buffer_load_dwordx4 v{VA160+k}, s[20:23], s55 offen offset:{1024*k} lds" for k in range(4)]
                + ["s_add_u32 m0, m0, 4096", tk("wo", f"buffer_load_dwordx4 v{VA160+4}, s[20:23], s55 offen lds")])
            put((tl, 3), [f"s_add_u32 s55, s55, {4*40960}"])
        if LAG <= blk < 10 + LAG:
            rd = []
            for h2 in range(2):
                s = 2 * (blk - LAG) + h2
                o, hi = gslot(s) % 49152, gslot(s) // 49152
                for t in range(3):
                    for h in range(2):
                        d = 12 * s + 4 * t + 2 * h
                        base, off = (VGT + 2 * hi, 6144 * t) if t < 2 else (VGT + 1 + 2 * hi, 32)
                        rd.append(f"ds_read_b64_tr_b16 a[{d}:{d+1}], v{base} offset:{o + off + 768*h}")
            spread(rd, (0, 2))
        if blk == 2:
            p = spread([[wt("dj")]] + [tk("djr", f"ds_read_b64_tr_b16 a[{232+4*u+2*h}:{233+4*u+2*h}], v255 offset:{32*u+256*h}")
                                       for u in range(2) for h in range(2)]
                       + [["s_lshl_b32 s8, s2, 2"], ["s_add_u32 s8, s8, s32"], ["s_lshl_b32 s8, s8, 11"], [f"s_add_u32 s8, s8, {WD_OFF}"], [wt("djr")]], (0, 2))
            spread([[tk("djst", f"buffer_store_dwordx4 a[{232+4*u}:{235+4*u}], v4, s[28:31], s8 offen offset:{1024*u} sc1") for u in range(2)]], p, True)
        if blk == 1:
            spread([[x] for x in ["s_and_b32 s9, s2, 7", "s_lshl_b32 s9, s9, 8", f"s_add_u32 s9, s9, {FL_OFF + FL_W}",
                                  f"s_cmp_lg_u32 s32, 0\ns_cselect_b32 s9, {WS_END}, s9",
                                  "s_mul_i32 s39, s32, 5120", "v_lshlrev_b32 v254, 2, v2"] + srd_lines(20, 52, 640 * 640 * 2)], (0, 2))
        if blk == 6:
            put((3, 1), ["s_mov_b64 exec, 1", "buffer_atomic_add v0, off, s[28:31], s9 sc1", "s_mov_b64 exec, -1"])
        if blk == 9:
            put((3, 1), [tk("xcc", "buffer_load_dword v14, v254, s[28:31], s11 offen sc1")])
        if blk == 10:
            def xpoll():
                poll(a, "x", "buffer_load_dword v14, v254, s[28:31], s11 offen sc1", "v_cmp_eq_u32 vcc, 0, v14", T["xcc"])
                a("v_cmp_ne_u32 vcc, s10, v14\ns_cmp_eq_u64 vcc, 0\ns_cselect_b32 s61, 1, 0")
                if "global" in OPT:
                    a("s_mov_b32 s61, 0")
                a(f"v_and_b32 v254, 7, v1\nv_lshlrev_b32 v254, 8, v254\ns_mov_b32 s9, {FL_OFF + FL_W}")
            put((2, 5), [F(xpoll, 0)])
            put((3, 1), [tk("wfl", "buffer_load_dword v14, v254, s[28:31], s9 offen sc1")])
        if blk == 11:
            def wpoll():
                poll(a, "w", "buffer_load_dword v14, v254, s[28:31], s9 offen sc1", "v_cmp_ne_u32 vcc, 32, v14", T["wfl"])
                a(f"""
                s_lshr_b32 s8, s2, 3
                s_lshl_b32 s8, s8, 2
                s_add_u32 s8, s8, s32
                s_mul_i32 s8, s8, 15360
                s_add_u32 s8, s8, {WD_OFF}
                s_add_u32 s9, s8, 7680
                v_min_u32 v254, 59, v1
                v_lshlrev_b32 v254, 7, v254
                """)
            put((2, 5), [F(wpoll, 0)])
            if "nodt" not in OPT:
                put((3, 1), ["buffer_load_dword v14, v254, s[28:31], s8 offen sc1", "buffer_load_dword v14, v254, s[28:31], s9 offen sc1"])
        if blk == 13:
            tq = ["s_lshl_b32 s58, s33, 2", "s_lshl_b32 s59, s37, 1", "s_add_u32 s58, s58, s59", "s_mul_i32 s58, s58, 20480",
                  "s_mul_i32 s59, s34, 2560", "s_add_u32 s58, s58, s59", "s_mul_i32 s35, s36, 1280", "s_add_u32 s58, s58, s35",
                  f"s_add_u32 s58, s58, {OF_OFF}", "s_add_u32 s59, s59, s54", f"s_add_u32 s59, s59, {HF_OFF}",
                  "s_lshl_b32 s57, s15, 2", "s_add_u32 s57, s57, s32", "s_mul_i32 s57, s57, 768", f"s_mul_i32 s35, s14, {8*49152}",
                  "s_add_u32 s57, s57, s35", f"s_add_u32 s57, s57, {AF_OFF}",
                  "s_lshl_b32 s8, s14, 11", f"s_add_u32 s8, s8, {FL_OFF+FL_A}", "s_lshl_b32 s9, s14, 10", f"s_add_u32 s9, s9, {FL_OFF+FL_O}",
                  "s_lshl_b32 s38, s14, 8", f"s_add_u32 s38, s38, {FL_OFF+FL_H}", f"s_add_u32 s35, s57, {4*49152}"]
            spread([tq[i:i + 2] for i in range(0, len(tq), 2)], (0, 2))
        if blk == 14:
            tv = ["v_lshlrev_b32 v10, 7, v2", "v_and_b32 v11, 7, v1", "v_lshlrev_b32 v11, 7, v11"]
            tl_ = ["buffer_load_dword v14, v10, s[28:31], s8 offen sc1", "buffer_load_dword v14, v11, s[28:31], s9 offen sc1",
                   "buffer_load_dword v14, v9, s[28:31], s38 offen sc1"]
            if LOC_O:
                tv += ["v_min_u32 v12, 9, v7", "v_lshlrev_b32 v12, 7, v12", "v_mul_u32_u24 v13, 20480, v8", "v_add_u32 v12, v12, v13"]
                tl_ += ["buffer_load_dword v14, v12, s[28:31], s58 offen sc1"]
            if LOC_H:
                tv += ["v_min_u32 v13, 19, v1", "v_lshlrev_b32 v13, 7, v13", "s_lshl_b32 s11, s14, 13", f"s_add_u32 s11, s11, {ST_OFF}", "v_lshlrev_b32 v251, 7, v1"]
                tl_ += ["buffer_load_dword v14, v13, s[28:31], s59 offen sc1", "buffer_load_dword v14, v251, s[28:31], s11 offen sc1"]
            if LOC_A:
                tv += ["v_min_u32 v252, 5, v2", "v_lshlrev_b32 v252, 7, v252", "v_mul_u32_u24 v253, 49152, v3", "v_add_u32 v252, v252, v253"]
                tl_ += ["buffer_load_dword v14, v252, s[28:31], s57 offen sc1", "buffer_load_dword v14, v252, s[28:31], s35 offen sc1"]
            p = spread([tv[i:i + 2] for i in range(0, len(tv), 2)], (0, 0))
            spread([tl_[i:i + 4] for i in range(0, len(tl_), 4)], p, True)
        if blk == 15:
            ex = ["s_mul_i32 s8, s32, 6144", f"s_add_u32 s8, s8, {L_E}", "s_xor_b32 s9, s32, 1", "s_mul_i32 s9, s9, 6144", f"s_add_u32 s9, s9, {L_E}",
                  "v_add_u32 v12, s8, v4", "v_add_u32 v13, s9, v4",
                  "s_lshl_b32 s38, s33, 1", "s_add_u32 s38, s38, s37", "s_lshl_b32 s38, s38, 8", f"s_add_u32 s38, s38, {FL_OFF+FL_O}",
                  "s_lshl_b32 s39, s34, 1", "s_add_u32 s39, s39, s36", "s_lshl_b32 s39, s39, 2", "s_add_u32 s39, s39, s38",
                  "v_lshrrev_b32 v10, 4, v7", "v_mul_u32_u24 v10, 20480, v10", "v_lshl_add_u32 v10, v2, 4, v10", "v_lshl_add_u32 v10, v8, 8, v10",
                  "v_lshlrev_b32 v11, 2, v2"]
            spread([ex[i:i + 3] for i in range(0, len(ex), 3)], (0, 0))
            for t in range(2):
                for j in range(3):
                    o = VO + 16 * t + 4 * j
                    put((1 + t, 2 + j), [f"ds_write_b128 v12, v[{o}:{o+3}] offset:{3072*t + 1024*j}"])
            put((3, 0), [F(lambda: (a.wait(T["wo"], ("lg", a.lg)), a("s_barrier")), 0)])
            for t in range(2):
                put((3, 1 + t), [f"ds_read_b128 v[{SA+16*t+4*j}:{SA+16*t+4*j+3}], v13 offset:{3072*t + 1024*j}" for j in range(3)])
        for tile in range(4):
            att_half(a, blk, tile, sl)
        assert not sl, (blk, sl)
        stamp(a, f"b{blk}")
    a(pv(3, vreg(15) + 12, SB + 24))
    stamp(a, "loop1")
    a("s_waitcnt lgkmcnt(0)")
    for t in range(2):
        o, s = VO + 32 + 16 * t, SA + 16 * t
        for r in range(12):
            a(f"v_add_f32 v{o+r}, v{o+r}, v{s+r}")
    a(f"s_mov_b32 s8, {fbits(2.0**-60)}\ns_mov_b32 s9, {fbits(2.0**60)}\ns_mov_b32 s35, 0")
    a.label("L_norm")
    for t in range(2):
        o = VO + 32 + 16 * t
        a(f"v_mov_b32 v{o+12}, v{o+8}\nv_mov_b32 v{o+13}, v{o+8}")
    for t in range(2):
        o = VO + 32 + 16 * t
        a(f"v_permlane32_swap_b32 v{o+12}, v{o+13}")
    l0, l1 = VO + 45, VO + 61
    a(f"""
    v_cmp_le_f32 vcc, s8, v{l0}
    v_cmp_ge_f32 s[10:11], s9, v{l0}
    v_cmp_le_f32 s[12:13], s8, v{l1}
    v_cmp_ge_f32 s[42:43], s9, v{l1}
    v_rcp_f32 v{l0}, v{l0}
    v_rcp_f32 v{l1}, v{l1}
    s_and_b64 vcc, vcc, s[10:11]
    s_and_b64 s[12:13], s[12:13], s[42:43]
    s_and_b64 vcc, vcc, s[12:13]
    s_cmp_eq_u64 vcc, -1
    s_cbranch_scc0 L_safe
    """)
    a.label("L_norm2")
    P0 = SB
    for t in range(2):
        o = VO + 32 + 16 * t
        for r in range(0, 12, 2):
            a(f"v_pk_mul_f32 v[{o+r}:{o+r+1}], v[{o+r}:{o+r+1}], v[{o+12}:{o+13}] op_sel:[0,1] op_sel_hi:[1,1]")
    oa, ob = VO + 32, VO + 48
    for j in range(2):
        a(f"v_cvt_pk_bf16_f32 v{P0+6+j}, v{ob+2*j}, v{ob+2*j+1}\nv_cvt_pk_bf16_f32 v{P0+10+j}, v{ob+8+2*j}, v{ob+9+2*j}")
    for j in range(4):
        a(f"v_cvt_pk_bf16_f32 v{P0+j}, v{oa+2*j}, v{oa+2*j+1}")
    a(f"v_permlane32_swap_b32 v{P0+6}, v{P0+10}\nv_permlane32_swap_b32 v{P0+7}, v{P0+11}\nv_cmp_lt_u32 vcc, 31, v1")
    for j in range(2):
        a(f"v_cvt_pk_bf16_f32 v{P0+4+j}, v{oa+8+2*j}, v{oa+9+2*j}\nv_cvt_pk_bf16_f32 v{P0+8+j}, v{ob+4+2*j}, v{ob+5+2*j}")
    for j in range(2):
        a(f"v_cndmask_b32 v{P0+10+j}, v{P0+10+j}, v{P0+6+j}, vcc")
    ost = dual(a, [f"buffer_store_dwordx4 v[{P0}:{P0+3}], v10, s[28:31], s58 offen",
                   f"buffer_store_dwordx4 v[{P0+8}:{P0+11}], v10, s[28:31], s58 offen offset:768",
                   "s_mov_b32 exec_hi, 0",
                   f"buffer_store_dwordx4 v[{P0+4}:{P0+7}], v10, s[28:31], s58 offen offset:512",
                   "s_mov_b32 exec_hi, -1"], LOC_O)
    stamp(a, "ostored")

    def safe_path():
        a.label("L_safe")
        a("s_cmp_lg_u32 s35, 0\ns_cbranch_scc1 L_norm2\ns_mov_b32 s35, 1")
        k, v, m = kreg(0), vreg(0), kreg(1)
        a(f"v_mov_b32 v{m}, 0xff800000\nv_mov_b32 v{m+1}, 0xff800000")
        for ps in range(2):
            a(f"s_mov_b32 s40, {KV_OFF}\ns_mov_b32 s41, {KV_OFF}")
            a.label(f"L_safe{ps}")
            for x in kloads(0) + (vloads(0) if ps else []):
                emit(a, x)
            a(f"{KINC}\n{VINC}\ns_waitcnt vmcnt(0)")
            for t in range(2):
                a(qk4(SA + 32 * t, k, 2 + t))
            for t in range(2):
                a(qk16(SA + 32 * t, k, 2 + t, 0))
                a(qk16(SA + 32 * t, k, 2 + t, 1))
            for t in range(2):
                s = SA + 32 * t
                if ps == 0:
                    for i in range(0, 32, 2):
                        a(f"v_max3_f32 v{m+t}, v{s+i}, v{s+i+1}, v{m+t}")
                else:
                    for i in range(32):
                        a(f"v_sub_f32 v{s+i}, v{s+i}, v{m+t}")
                    for i in range(32):
                        a(f"v_exp_f32 v{s+i}, v{s+i}")
                    for j in range(4):
                        a(pv(2 + t, v + 4 * j, s + 8 * j))
            a(f"s_nop 7\ns_nop 7\ns_cmp_lt_u32 s40, {KV_OFF + 32*KVB}\ns_cbranch_scc1 L_safe{ps}")
            if ps == 0:
                for t in range(2):
                    a(f"v_mov_b32 v{m+2}, v{m+t}\nv_permlane32_swap_b32 v{m+t}, v{m+2}\nv_max_f32 v{m+t}, v{m+t}, v{m+2}")
                for i in range(32):
                    a(f"v_mov_b32 v{VO+32+i}, 0")
        a("s_branch L_norm")
    a.cold.append(safe_path)

    NW = 16
    VCS = 108
    VX, VACC, VW, VONE = 16, 124, 144, 100
    wdreg = [208 + 4 * i for i in range(12)] + [164 + 4 * i for i in range(11)] + [132 + 4 * i for i in range(8)]
    NWR, NWL = len(wdreg), 25
    AACT, NACT, AWD = 0, 31, 124
    def wd_op(f):
        return f"v[{wdreg[f]}:{wdreg[f]+3}]" if f < NWR else f"a[{AWD+4*(f-NWR)}:{AWD+4*(f-NWR)+3}]"
    def wd_items(lo, hi, lds=False):
        o = []
        for f in range(lo, hi):
            ks, t = divmod(f, 5)
            if lds:
                o.append(f"s_add_u32 m0, s46, {(f-NWR)*1024}\ns_add_u32 s47, s45, {ks*40960 + 1024*t}")
                o.append(tk(("wd", f), "buffer_load_dwordx4 v4, s[28:31], s47 offen sc1 lds"))
            else:
                if t in (0, 4) or f == lo:
                    o.append(f"s_add_u32 s47, s45, {ks*40960 + (4096 if t == 4 else 0)}")
                o.append(tk(("wd", f), f"buffer_load_dwordx4 {wd_op(f)}, v4, s[28:31], s47 offen offset:{1024*(t&3)} sc1"))
        return o
    a(f"""
    v_lshrrev_b32 v12, 2, v1
    v_mul_u32_u24 v12, 160, v12
    v_and_b32 v13, 3, v1
    v_lshl_add_u32 v12, v13, 3, v12
    v_add_u32 v13, 51200, v12
    v_mov_b32 v{VONE}, 0x3f803f80
    v_mov_b32 v{VONE+1}, 0x3f803f80
    v_mov_b32 v{VONE+2}, 0x3f803f80
    v_mov_b32 v{VONE+3}, 0x3f803f80
    s_mul_i32 s45, s32, {12*40960}
    s_mul_i32 s35, s34, 5120
    s_add_u32 s45, s45, s35
    s_add_u32 s45, s45, {WD_OFF}
    s_mul_i32 s46, s32, 25600
    s_add_u32 s35, s54, {OF_OFF}
    """)
    wq = []
    for i in range(100):
        s, t = divmod(i, 5)
        d = VW + 4 * (i % NW)
        wq += [tk(("o", i), f"ds_read_b64_tr_b16 v[{d+2*h}:{d+2*h+1}], v{12 + (s >= 10)} offset:{(s % 10)*5120 + 2560*h + 32*t}") for h in range(2)]
    pre = wd_items(0, opt("wd0", 12)) + [wq.pop(0) for _ in range(2 * (NW - 1))]
    for i in range(10):
        pre += [f"v_accvgpr_read_b32 v{96+(i&1)}, a{AXR+i}", f"v_lshlrev_b32 v{VACC+2*i}, 16, v{96+(i&1)}", f"v_and_b32 v{VACC+2*i+1}, 0xffff0000, v{96+(i&1)}"]
    def colsum(lo, hi, q):
        for s in range(lo, hi):
            for t in range(3):
                c = f"v[{VCS+4*t}:{VCS+4*t+3}]"
                a(mf16(c, f"a[{12*s+4*t}:{12*s+4*t+3}]", f"v[{VONE}:{VONE+3}]", "0" if s == 0 else c))
                gap(a, q)
    C1 = opt("c1", 6 if LOC_O else 11)
    colsum(0, C1, pre)
    a.wait(ost)
    flag(a, "s39")
    opl = "buffer_load_dword v14, v11, s[28:31], s38 offen sc1"
    colsum(C1, C1 + 3, pre)
    t1 = a(opl)
    colsum(C1 + 3, C1 + 6, pre)
    for x in pre:
        emit(a, x)
    poll(a, "o", opl, "v_cmp_eq_u32 vcc, 0, v14", t1)
    stamp(a, "oflag")
    oq = []
    for s in range(20):
        oq.append(tk(("x", s), f"buffer_load_dwordx4 v[{VX+4*s}:{VX+4*s+3}], v4, s[28:31], s35 offen offset:{1024*(s&3)} sc1"))
        if s & 3 == 3 and s < 19:
            oq.append("s_add_u32 s35, s35, 4096")
    for _ in range(20):
        emit(a, oq.pop(0))
    colsum(C1 + 6, 20, [])
    a.wait(T["x", 0], T["o", 0])
    for s in range(20):
        for t in range(5):
            i = 5 * s + t
            w, c = VW + 4 * (i % NW), f"v[{VACC+4*t}:{VACC+4*t+3}]"
            a(mf16(c, f"v[{w}:{w+3}]", f"v[{VX+4*s}:{VX+4*s+3}]", c))
            if i < 99:
                a.wait(T["o", i + 1], T["x", s + 1] if t == 4 else None)
            done = 100 - len(wq) // 2
            if oq and t == 1:
                while cost(oq[0]) == 0:
                    emit(a, oq.pop(0))
                emit(a, oq.pop(0))
            elif wq and done < i + NW:
                emit(a, wq.pop(0))
                emit(a, wq.pop(0))
    for x in oq:
        emit(a, x)
    stamp(a, "womain")
    a(f"""
    v_lshrrev_b32 v12, 1, v3
    v_and_b32 v13, 1, v3
    v_lshlrev_b32 v6, 4, v2
    v_lshl_add_u32 v10, v12, 8, v6
    v_lshl_add_u32 v7, v13, 3, v10
    v_lshl_add_u32 v10, v13, 9, v10
    v_lshl_add_u32 v6, v13, 3, v6
    s_lshl_b32 s35, s33, 2
    s_add_u32 s35, s35, s32
    s_lshl_b32 s56, s35, 10
    s_lshl_b32 s38, s34, 7
    s_add_u32 s56, s56, s38
    s_add_u32 s56, s56, {ST_OFF}
    """)
    H = 16
    for i in range(10):
        a(f"v_cvt_pk_bf16_f32 v{H+i}, v{VACC+2*i}, v{VACC+2*i+1}")
    a(f"v_mov_b32 v{H+12}, 0\nv_mov_b32 v{H+13}, 0")
    for i in range(10):
        a(f"v_accvgpr_write_b32 a{AXR+i}, v{H+i}")
    for p in range(2):
        b = H + 4 * p
        a(f"v_permlane16_swap_b32 v{b}, v{b+2}\nv_permlane16_swap_b32 v{b+1}, v{b+3}")
    dual(a, [f"buffer_store_dwordx4 v[{H}:{H+3}], v10, s[28:31], s59 offen",
             f"buffer_store_dwordx4 v[{H+4}:{H+7}], v10, s[28:31], s59 offen offset:1024",
             f"buffer_store_dwordx2 v[{H+8}:{H+9}], v7, s[28:31], s59 offen offset:2048"], LOC_H)
    for i in range(10):
        a(f"v_dot2c_f32_bf16 v{H+12}, v{H+i}, v{VONE}\nv_dot2c_f32_bf16 v{H+13}, v{H+i}, v{H+i}")
    a("\n".join(weave([xreduce4(H + 12, H + 14), xreduce4(H + 13, H + 15)])))
    hst = dual(a, ["s_mov_b64 exec, 0xffff", f"buffer_store_dwordx2 v[{H+12}:{H+13}], v5, s[28:31], s56 offen", "s_mov_b64 exec, -1"], LOC_H)
    stamp(a, "hstored")

    VF, NF, VC, VG, VT_ = 16, 6, 40, 64, 72
    VST, VMX, VK_, VPK = 76, 92, 100, 124
    VS = 132
    order = [0, 4, 1, 5, 2, 6, 3, 7]
    a(f"""
    s_lshl_b32 s38, s14, 8
    s_add_u32 s38, s38, {FL_OFF+FL_H}
    s_and_b32 s35, s35, 7
    s_lshl_b32 s35, s35, 5
    s_lshl_b32 s39, s34, 2
    s_add_u32 s39, s39, s35
    s_add_u32 s39, s39, s38
    s_mul_i32 s40, s14, {8*20480}
    s_mul_i32 s41, s32, 5120
    s_add_u32 s40, s40, s41
    s_add_u32 s40, s40, {HF_OFF}
    s_add_u32 s41, s41, {L_E}
    v_add_u32 v13, {L_E}, v4
    s_lshl_b32 s56, s14, 13
    s_add_u32 s56, s56, {ST_OFF}
    v_lshlrev_b32 v12, 3, v2
    v_and_b32 v8, 1, v3
    v_lshl_add_u32 v12, v8, 10, v12
    v_lshrrev_b32 v8, 1, v3
    v_lshl_add_u32 v12, v8, 12, v12
    v_mul_u32_u24 v8, {4*49152}, v8
    v_add_u32 v8, v8, v6
    v_lshl_add_u32 v11, v3, 9, v11
    s_mov_b32 s44, {fbits(-LOG2E)}
    """)
    WD0, WD1 = opt("wd0", 12), opt("wd1", 23)
    for x in wd_items(WD0, WD1):
        emit(a, x)
    a.wait(hst)
    flag(a, "s39")
    a(f"""
    s_lshl_b32 s8, s14, 11
    s_add_u32 s8, s8, {FL_OFF+FL_A}
    s_lshr_b32 s35, s15, 2
    s_lshl_b32 s35, s35, 7
    s_add_u32 s39, s8, s35
    s_and_b32 s35, s15, 3
    s_lshl_b32 s35, s35, 4
    s_add_u32 s39, s39, s35
    s_lshl_b32 s35, s32, 2
    s_add_u32 s39, s39, s35
    s_lshl_b32 s35, s32, 7
    s_add_u32 s8, s8, s35
    s_mul_i32 s9, s33, {4*49152}
    s_mul_i32 s35, s32, 12288
    s_add_u32 s9, s9, s35
    s_add_u32 s9, s9, {AF_OFF}
    """)
    srd(a, 24, 50, XB)
    poll(a, "h", "buffer_load_dword v14, v9, s[28:31], s38 offen sc1", "v_cmp_eq_u32 vcc, 0, v14")
    stamp(a, "hflag")
    def a_dma(i):
        return [f"s_add_u32 m0, s41, {(i%3)*20480}\ns_add_u32 s42, s40, {order[i]*20480}"] + \
               [f"buffer_load_dwordx4 v4, s[28:31], s42 offen offset:{1024*k} sc1 lds" for k in range(4)] + \
               ["s_add_u32 m0, m0, 4096\ns_add_u32 s42, s42, 4096", tk(("a", i), "buffer_load_dwordx4 v4, s[28:31], s42 offen sc1 lds")]
    for x in a_dma(0):
        emit(a, x)
    for j in range(2):
        for c in range(8):
            T["st", j] = a(f"buffer_load_dwordx2 v[{VS+16*j+2*c}:{VS+16*j+2*c+1}], v12, s[28:31], s56 offen offset:{2048*j+128*c} sc1")
        if j == 0:
            for x in a_dma(1):
                emit(a, x)
    def stats(j):
        b = VS + 16 * j
        o = [wt(("st", j))]
        for c in range(1, 8):
            o += [f"v_add_f32 v{b}, v{b}, v{b+2*c}", f"v_add_f32 v{b+1}, v{b+1}, v{b+2*c+1}"]
        m, v, r = VST + 8 * j, VST + 8 * j + 1, VST + 8 * j + 2
        return o + [f"v_mul_f32 v{m}, {fbits(1/640)}, v{b}", f"v_mul_f32 v{v}, {fbits(1/640)}, v{b+1}",
                    f"v_fma_f32 v{v}, -v{m}, v{m}, v{v}", f"v_max_f32 v{v}, 0, v{v}", f"v_add_f32 v{v}, {fbits(1e-5)}, v{v}",
                    f"v_mov_b32 v{m+4}, v{m}", f"v_rsq_f32 v{r}, v{v}", f"v_mov_b32 v{v+4}, v{v}", f"v_mul_f32 v{r}, s44, v{r}",
                    f"v_mov_b32 v{r+4}, v{r}", f"v_permlane16_swap_b32 v{m}, v{m+4}", f"v_permlane16_swap_b32 v{v}, v{v+4}",
                    f"v_permlane16_swap_b32 v{r}, v{r+4}"]

    def corr(d, x, cs, m, k):
        return [f"v_fma_f32 v{d+i}, -v{m}, v{cs+i}, v{x+i}" for i in range(k)]

    def act4(g, u, m, pk):
        o = weave([[f"v_mul_f32 v{VT_+i}, v{g+i}, v{m+2}", f"v_exp_f32 v{VT_+i}, v{VT_+i}", f"v_mul_f32 v{g+i}, v{g+i}, v{u+i}",
                    f"v_fma_f32 v{VT_+i}, v{VT_+i}, v{m+1}, v{m+1}", f"v_rcp_f32 v{VT_+i}, v{VT_+i}",
                    f"v_mul_f32 v{g+i}, v{g+i}, v{VT_+i}"] for i in range(4)])
        return o + [f"v_cvt_pk_bf16_f32 v{pk}, v{g}, v{g+1}", f"v_cvt_pk_bf16_f32 v{pk+1}, v{g+2}, v{g+3}"]

    def epilogue(i):
        p, c = i >> 1, VC + 12 * (i & 1)
        if i % 2 == 0:
            o = []
            for k in range(3):
                o += [f"v_mov_b32 v{VK_+k}, v{VST+4*p+k}", f"v_mov_b32 v{VK_+4+k}, v{VST+4*p+k}"]
            o += [f"v_permlane32_swap_b32 v{VK_+k}, v{VK_+4+k}" for k in range(3)]
            o += corr(VG, c, VCS, VK_, 8) + corr(VMX, c + 8, VCS + 8, VK_, 4)
            return o, act4(VG, VG + 4, VK_, VPK)
        o = corr(VMX + 4, c + 8, VCS + 8, VK_ + 4, 4) + corr(VG, c, VCS, VK_ + 4, 8)
        r = act4(VG, VG + 4, VK_ + 4, VPK + 2)
        r2 = [f"v_permlane32_swap_b32 v{VMX+k}, v{VMX+4+k}" for k in range(4)] + act4(VMX, VMX + 4, VST + 4 * p, VPK + 4)
        def st(k):
            line = [f"buffer_store_dwordx2 v[{VPK}:{VPK+1}], v7, s[28:31], s57 offen",
                    f"buffer_store_dwordx2 v[{VPK+2}:{VPK+3}], v7, s[28:31], s35 offen",
                    f"buffer_store_dwordx2 v[{VPK+4}:{VPK+5}], v8, s[28:31], s57 offen offset:512"][k]
            def f():
                T["as", p, k] = dual(a, [line], LOC_A)
            return F(f, 2)
        return o, [st(0)] + r + [f"s_add_u32 s35, s57, {4*49152}", st(1)] + r2 + [st(2), "s_add_u32 s57, s57, 49152"]

    def signal(p):
        def f():
            a.wait(T["as", p, 2])
            flag(a, "s39", 512 * p)
        return F(f, 2)
    apl = "buffer_load_dword v14, v11, s[28:31], s8 offen sc1"
    def acheck(j):
        return F(lambda: poll(a, f"a{j}", apl, "v_cmp_eq_u32 vcc, 0, v14", T["ap", j], 0xffff << (16 * j)), 2)
    def act_items(j):
        o = []
        for s in range(12):
            k = 12 * j + s
            d = AACT + 4 * (k % NACT)
            if s % 4 == 0:
                o.append(f"s_add_u32 s42, s9, {j*49152 + s*1024}")
            o.append(tk(("f", k), f"buffer_load_dwordx4 a[{d}:{d+3}], v4, s[28:31], s42 offen offset:{1024*(s&3)} sc1"))
        return o

    wdq = wd_items(NWR, NWR + NWL, True) + wd_items(WD1, NWR)
    def do_rd(i):
        mi, s = divmod(i, 20)
        if s == 0:
            a.wait(T["a", mi])
            a("s_barrier")
        d = VF + 4 * (i % NF)
        T["r", i] = a(f"ds_read_b128 v[{d}:{d+3}], v13 offset:{(mi%3)*20480 + s*1024}")
    AHEAD = NF - 1
    for i in range(AHEAD):
        do_rd(i)
    a.wait(T["r", 0])
    stamp(a, "gu0")
    mq = a_dma(2)
    ep = []
    def popmem(q):
        while q and cost(q[0]) == 0:
            emit(a, q.pop(0))
        if q:
            emit(a, q.pop(0))
    for mi in range(8):
        c = VC + 12 * (mi & 1)
        must = 0
        if mi == 0:
            late = stats(0) + stats(1)
        else:
            e0, e1 = epilogue(mi - 1)
            late = e0 + e1
            must = len(e1)
        for s in range(20):
            i = mi * 20 + s
            f = VF + 4 * (i % NF)
            if s == (2 if mi else 6):
                ep += late
            if mi in (3, 5, 7) and s == 12:
                mq.append(signal((mi - 3) // 2))
            if mi == 6 and s == 8:
                mq.append(tk(("ap", 0), apl))
            if mi == 6 and s == 16:
                mq.append(acheck(0))
            if mi == 7 and s == 1:
                mq += act_items(0)
                mq.insert(8, tk(("ap", 1), apl))
            if mi == 7 and s == 15:
                mq += [acheck(1)] + act_items(1)
            for t in range(3):
                cc = f"v[{c+4*t}:{c+4*t+3}]"
                a(mf16(cc, f"a[{12*s+4*t}:{12*s+4*t+3}]", f"v[{f}:{f+3}]", "0" if s == 0 else cc))
                budget, scalar = 2, 1
                if t == 2 and i + 1 < 160:
                    a.wait(T["r", i + 1])
                    scalar = 0
                if t == 0 and i + AHEAD < 160:
                    do_rd(i + AHEAD)
                    budget = 1
                    if (i + AHEAD) % 20 == 0 and mi + 2 < 8 and mi:
                        mq += a_dma(mi + 2)
                if t == 1:
                    if mq:
                        popmem(mq)
                        budget = 0
                    elif wdq and (s % 3 == 0 or not ep):
                        popmem(wdq)
                        budget = 0
                gap(a, ep, budget, scalar)
        while len(ep) > must:
            emit(a, ep.pop(0))
        print(f"m{mi}: epilogue items carried {len(ep)}, mem {len(mq)}, down weights left {len(wdq)}", file=sys.stderr)
        stamp(a, f"m{mi}")
    assert not wdq

    DC, DH, DR = 16, 56, 76
    RB = 4 * 5376
    e0, e1 = epilogue(7)
    a("v_add_u32 v12, s46, v4")
    a.wait(T["wd", NWR + NWL - 1])
    lq = [tk(("wl", f), f"ds_read_b128 {wd_op(f)}, v12 offset:{1024*(f-NWR)}") for f in range(NWR, NWR + NWL)]
    mq = wd_items(NWR + NWL, 60) + mq
    setup = f"""s_mul_i32 s35, s32, 5376
    s_add_u32 s35, s35, {L_E}
    v_mul_u32_u24 v13, 336, v2
    v_lshl_add_u32 v13, v3, 4, v13
    v_add_u32 v13, s35, v13
    v_mul_u32_u24 v5, 6554, v1
    v_lshrrev_b32 v5, 16, v5
    v_mul_u32_u24 v6, 10, v5
    v_sub_u32 v6, v1, v6
    v_min_u32 v5, 3, v5
    s_lshl_b32 s35, s32, 2
    v_add_u32 v5, s35, v5
    v_mul_u32_u24 v7, 336, v5
    v_lshl_add_u32 v7, v6, 5, v7
    v_add_u32 v7, {L_E}, v7
    v_mul_u32_u24 v8, 1280, v5
    v_lshl_add_u32 v8, v6, 4, v8
    v_mov_b32 v5, 0x7ff00000
    v_cmp_gt_u32 s[10:11], 40, v1
    s_mul_i32 s41, s33, {64*1280}
    s_mul_i32 s35, s34, 160
    s_add_u32 s41, s41, s35
    v_cndmask_b32 v8, v5, v8, s[10:11]""".split("\n")
    setup = [x.strip() for x in setup]
    for i in range(10):
        setup += [f"v_accvgpr_read_b32 v{DR+(i&1)}, a{AXR+i}", f"v_lshlrev_b32 v{DH+2*i}, 16, v{DR+(i&1)}", f"v_and_b32 v{DH+2*i+1}, 0xffff0000, v{DR+(i&1)}"]

    def publish(j):
        c = DC + 20 * (j & 1)
        o = [f"s_cmp_eq_u32 s32, {j}\ns_cselect_b32 s35, 1.0, 0"]
        for t in range(5):
            o += [f"v_fma_f32 v{c+i}, s35, v{DH+i}, v{c+i}" for i in range(4 * t, 4 * t + 4)]
            o += [f"ds_write_b128 v13, v[{c+4*t}:{c+4*t+3}] offset:{RB*(j&1) + 64*t}"]
        o += ["s_waitcnt lgkmcnt(0)\ns_barrier"]
        r = [f"ds_read_b128 v[{DR+8*k+4*h}:{DR+8*k+4*h+3}], v7 offset:{RB*(j&1) + 5376*k + 16*h}" for k in range(4) for h in range(2)]
        r += ["s_waitcnt lgkmcnt(4)"]
        r += [f"v_add_f32 v{DR+i}, v{DR+i}, v{DR+8+i}" for i in range(8)]
        r += ["s_waitcnt lgkmcnt(0)"]
        r += [f"v_add_f32 v{DR+16+i}, v{DR+16+i}, v{DR+24+i}" for i in range(8)]
        r += [f"v_add_f32 v{DR+i}, v{DR+i}, v{DR+16+i}" for i in range(8)]
        r += [f"v_cvt_pk_bf16_f32 v{DR+8+i}, v{DR+2*i}, v{DR+2*i+1}" for i in range(4)]
        r += [f"buffer_store_dwordx4 v[{DR+8}:{DR+11}], v8, s[24:27], s41 offen", f"s_add_u32 s41, s41, {16*1280}"]
        return o + r

    stamp(a, "dn0")
    for j in range(4):
        c = DC + 20 * (j & 1)
        for s in range(12):
            k = 12 * j + s
            x = AACT + 4 * (k % NACT)
            if j == 0 and s == 1:
                ep += e0 + e1 + ["s_barrier"] + setup
            if j and s == 1:
                ep += publish(j - 1)
            if (j, s) == (0, 6):
                mq.append(tk(("ap", 2), apl))
            if (j, s) == (0, 10):
                mq += [acheck(2)] + act_items(2)
            if (j, s) == (1, opt("sg3", 4)):
                mq.append(signal(3))
            if (j, s) == (1, 11):
                mq.append(tk(("ap", 3), apl))
            if (j, s) == (2, 3):
                mq += [acheck(3)] + act_items(3)
            for t in range(5):
                f = 5 * s + t
                if j == 0:
                    while NWR <= f < NWR + NWL and ("wl", f) not in T:
                        emit(a, lq.pop(0))
                    a.wait(T["f", k] if t == 0 else None, T["wl", f] if NWR <= f < NWR + NWL else T["wd", f] if f >= NWR else None)
                elif t == 0:
                    while ("f", k) not in T:
                        popmem(mq)
                    a.wait(T["f", k])
                cc = f"v[{c+4*t}:{c+4*t+3}]"
                a(mf16(cc, wd_op(f), f"a[{x}:{x+3}]", "0" if s == 0 else cc))
                budget = 2
                if mq and t in (1, 3):
                    popmem(mq)
                    budget = 0
                elif lq:
                    emit(a, lq.pop(0))
                    budget = 1
                gap(a, ep, budget)
        print(f"d{j}: epilogue items left {len(ep)}, mem {len(mq)}", file=sys.stderr)
        for x in ep:
            emit(a, x)
        ep = []
        stamp(a, f"d{j}")
    for x in publish(3):
        emit(a, x)
    a.label("L_end")
    a("s_endpgm")
    for c in a.cold:
        c()
    a.raw(".p2align 8")
    a.label("L_code_end")
    return n


def VargC(vc, s):
    return vc if s % 2 == 0 else 28


def build():
    a = Asm()
    n = kernel(a)
    s = open("cdna_kernels/%s.s.ref" % NAME).read().split("; Override launch")[0]
    s += "; @launch grid=(256,1,1) block=(256,1,1) lds=163840\n"
    s += '.amdgcn_target "amdgcn-amd-amdhsa--gfx950"\n.text\n' + a.text()
    s += f""".section .rodata,"a"
.p2align 6
.amdhsa_kernel {n}
  .amdhsa_next_free_vgpr 512
  .amdhsa_next_free_sgpr 102
  .amdhsa_accum_offset 256
  .amdhsa_group_segment_fixed_size 0
  .amdhsa_kernarg_size 96
  .amdhsa_user_sgpr_count 2
  .amdhsa_user_sgpr_kernarg_segment_ptr 1
  .amdhsa_system_sgpr_workgroup_id_x 1
.end_amdhsa_kernel
"""
    return s


if __name__ == "__main__":
    OPT.update(sys.argv[2:])
    out = sys.argv[1] if len(sys.argv) > 1 else "v3.s"
    open(out, "w").write(build())
```

```python
import struct, sys, math
from asmlib import *

NAME = "sequential_preLN__grouped_kv_mqa__swiglu_ffn__prompt"
KV_OFF = 0x000000
FL_OFF = 0x040000
OF_OFF = 0x050000
HF_OFF = 0x2D0000
ST_OFF = 0x550000
AF_OFF = 0x570000
WD_OFF = 0xB70000
WS_END = WD_OFF + 0x1E0000
FL_XCC, FL_W, FL_O, FL_K, FL_H, FL_A = 0, 0x1000, 0x2000, 0x4000, 0x6000, 0x8000
KVB = 5632
XB = 2048 * 640 * 2
LOG2E = 1.4426950408889634
SPIN = 200000
OPT = set()


def opt(name, default):
    for o in OPT:
        if o.startswith(name + "="):
            return int(o.split("=")[1])
    return default


def fbits(x):
    return "0x%08x" % struct.unpack("<I", struct.pack("<f", x))[0]


def srd_lines(d, base, size):
    return [f"s_mov_b32 s{d}, s{base}", f"s_and_b32 s{d+1}, s{base+1}, 0xffff", f"s_mov_b32 s{d+2}, {size}", f"s_mov_b32 s{d+3}, 0x20000"]


def srd(a, d, base, size):
    a("\n".join(srd_lines(d, base, size)))


def adv(d, inc):
    return f"s_add_u32 s{d}, s{d}, {inc}\ns_addc_u32 s{d+1}, s{d+1}, 0"


def setbase(d, pair, inc):
    return f"s_add_u32 s{d}, s{pair}, {inc}\ns_addc_u32 s{d+1}, s{pair+1}, 0"


def stamp(a, n):
    a.raw(f"; stamp {n}")


def emit(a, x):
    if x is not None:
        return x() if callable(x) else a(x)


def xreduce4(v, t):
    return [f"v_mov_b32 v{t}, v{v}", f"v_permlane16_swap_b32 v{v}, v{t}", f"v_add_f32 v{v}, v{v}, v{t}",
            f"v_mov_b32 v{t}, v{v}", f"v_permlane32_swap_b32 v{v}, v{t}", f"v_add_f32 v{v}, v{v}, v{t}"]


def weave(lists):
    o = []
    for i in range(max(map(len, lists))):
        o += [l[i] for l in lists if i < len(l)]
    return o


class F:
    def __init__(self, fn, c):
        self.fn, self.c = fn, c
    def __call__(self):
        return self.fn()


def cost(x):
    if callable(x):
        return x.c
    op = x.split()[0]
    if op in TRANS or op.startswith("buffer_") or op.startswith("ds_write"):
        return 2
    if op.startswith("s_"):
        return 0
    return 1


def gap(a, q, budget=2, scalar=1):
    if q and q[0] is None:
        q.pop(0)
        return budget
    while q and scalar > 0 and budget == 2 and q[0] is not None and cost(q[0]) == 0:
        emit(a, q.pop(0))
        scalar -= 1
    while q and budget > 0 and q[0] is not None:
        c = max(cost(q[0]), 1)
        k = 0
        if c > budget:
            k = hoistable(q)
            if k is None:
                break
            c = 1
        emit(a, q.pop(k))
        budget -= c
    return budget


def hoistable(q, window=10):
    d, u = set(), set()
    for k, x in enumerate(q[:window]):
        if x is None or callable(x) or not x.startswith("v_"):
            return None
        i = Ins(x)
        if k and cost(x) == 1 and not (i.uses & d or i.defs & (d | u)):
            return k
        d |= i.defs
        u |= i.uses
    return None


def mf16(d, x, y, c):
    return f"v_mfma_f32_16x16x32_bf16 {d}, {x}, {y}, {c}"


def mf32(d, x, y, c):
    return f"v_mfma_f32_16x16x4_f32 {d}, {x}, {y}, {c}"


def r4(p, n):
    return f"{p}[{n}:{n+3}]"


def lines(text):
    return [x.strip() for x in text.strip().split("\n") if x.strip()]


def rows160_addr(d0, t):
    o = []
    for i in range(5):
        d = d0 + i
        o += [f"v_add_u32 v{t}, {64*i}, v1", f"v_mul_u32_u24 v{t+1}, 6554, v{t}", f"v_lshrrev_b32 v{t+1}, 16, v{t+1}",
              f"v_mul_u32_u24 v{t+2}, 10, v{t+1}", f"v_sub_u32 v{t}, v{t}, v{t+2}", f"v_and_b32 v{t+2}, 3, v{t+1}",
              f"v_bfe_u32 v{d}, v{t+1}, 2, 2", f"v_lshl_add_u32 v{t+2}, v{d}, 3, v{t+2}", f"v_lshrrev_b32 v{t+1}, 4, v{t+1}",
              f"v_lshl_add_u32 v{t+1}, v{t+1}, 2, v{t+2}", f"v_mul_u32_u24 v{t+1}, 1280, v{t+1}",
              f"v_lshl_add_u32 v{d}, v{t}, 4, v{t+1}"]
        if 0 < i < 4:
            o.append(f"v_subrev_u32 v{d}, {1024*i}, v{d}")
    return o


SA, SB, VO, VQ, VKV = 16, 48, 80, 144, 168
VIDX = 15
VA160 = 246
VGD, VGT = 251, 10
L_E = 102400
L_REG = (49152, 110592, 0, 49152, 110592)
AXR = 240


def q16(t):
    return VQ + 12 * (t >> 1) + 4 * (t & 1)


def q4(t):
    return VQ + 12 * (t >> 1) + 8 + 2 * (t & 1)


def kreg(n):
    return VKV + 26 * (n % 3)


def vreg(n):
    return VKV + 26 * (n % 3) + 10


def pv(t, v, s):
    o = VO + 16 * t
    return f"v_smfmac_f32_32x32x32_bf16 v[{o}:{o+15}], v[{v}:{v+3}], v[{s}:{s+7}], v{VIDX}"


def qk4(sn, k, t):
    return f"v_mfma_f32_32x32x4bf16_1k v[{sn}:{sn+31}], v[{k+8}:{k+9}], v[{q4(t)}:{q4(t)+1}], 0"


def qk16(sn, k, t, hi):
    d = sn + 16 * hi
    return f"v_mfma_f32_32x32x16_bf16 v[{d}:{d+15}], v[{k+4*hi}:{k+4*hi+3}], v[{q16(t)}:{q16(t)+3}], v[{d}:{d+15}]"


def att_half(a, blk, tile, sl):
    first, last = (blk, tile) == (0, 0), (blk, tile) == (15, 3)
    sc, sn = (SA, SB) if tile % 2 == 0 else (SB, SA)
    nt, nb = (tile + 1) & 3, blk + (tile == 3)
    pt, pb = (tile - 1) & 3, blk - (tile == 0)
    def E(lo, hi):
        for i in range(lo, hi):
            a(f"v_exp_f32 v{sc+i}, v{sc+i}")
    def M(t, k):
        if t is not None:
            a(t)
        for x in sl.pop((tile, k), []):
            emit(a, x)
    v = vreg(blk)
    E(0, 2)
    M(None if first else pv(pt, vreg(pb) + 12, sn + 24), 0)
    E(2, 5)
    M(None if last else qk4(sn, kreg(nb), nt), None)
    E(5, 13)
    M(pv(tile, v, sc), 1)
    E(13, 18)
    M(pv(tile, v + 4, sc + 8), 2)
    E(18, 21)
    M(None if last else qk16(sn, kreg(nb), nt, 0), 3)
    E(21, 24)
    M(None if last else qk16(sn, kreg(nb), nt, 1), 4)
    E(24, 28)
    M(pv(tile, v + 8, sc + 16), 5)
    E(28, 32)


def poll(a, name, load, cmp, first=None, mask=None):
    def test():
        a(cmp)
        if mask is not None:
            a(f"s_and_b32 vcc_lo, vcc_lo, {hex(mask & 0xffffffff)}\ns_and_b32 vcc_hi, vcc_hi, {hex(mask >> 32)}")
        a("s_cmp_eq_u64 vcc, 0")
    def spin():
        a(f"s_mov_b32 s60, {SPIN}")
        a.label(f"L_{name}_spin")
        vm = a.vm
        a(load)
        a.vm = vm
        a("s_sub_u32 s60, s60, 1\ns_waitcnt vmcnt(0)")
        test()
        a(f"s_cbranch_scc1 L_{name}_ok\ns_cmp_lg_u32 s60, 0\ns_cbranch_scc1 L_{name}_spin")
    if first is None:
        spin()
    else:
        a.wait(first)
        test()
        a(f"s_cbranch_scc0 L_{name}_slow")
        def cold():
            a.label(f"L_{name}_slow")
            spin()
            a(f"s_branch L_{name}_ok")
        a.cold.append(cold)
    a.label(f"L_{name}_ok")


_uid = [0]


def dual(a, lines, local):
    wt = [l + " sc1" if l.startswith("buffer_store") else l for l in lines]
    tok = None
    if not local:
        for l in wt:
            tok = a(l) or tok
        return tok
    _uid[0] += 1
    u = _uid[0]
    a(f"s_cmp_eq_u32 s61, 0\ns_cbranch_scc1 L_st{u}_g")
    for l in lines:
        tok = a(l) or tok
    a.label(f"L_st{u}_j")
    def cold():
        a.label(f"L_st{u}_g")
        for l in wt:
            a(l)
        a(f"s_branch L_st{u}_j")
    a.cold.append(cold)
    return tok


def flag(a, soff, off=0):
    return dual(a, ["s_mov_b64 exec, 1", f"buffer_store_dword v0, off, s[28:31], {soff} offset:{off}", "s_mov_b64 exec, -1"], True)


def kernel(a):
    n = NAME + "_kernel"
    LOC_O, LOC_H, LOC_A = "lo" in OPT, "lh" in OPT, "la" in OPT
    a.cold = []
    T = {}
    def tk(name, text):
        def f():
            T[name] = a(text)
        r = F(f, cost(text))
        r.text = text
        return r
    def wt(*names):
        return F(lambda: a.wait(*[T[x] for x in names]), 0)
    def run(items):
        for x in items:
            emit(a, x)
    def popmem(q):
        while q and cost(q[0]) == 0:
            emit(a, q.pop(0))
        if q:
            emit(a, q.pop(0))
    a.raw(".p2align 8")
    a.raw(f".globl {n}")
    a.raw(f".type {n},@function")
    a.label(n)
    a("s_cmp_ge_u32 s2, 256\ns_cbranch_scc1 L_end")
    a("s_load_dwordx8 s[4:11], s[0:1], 0\ns_load_dwordx4 s[56:59], s[0:1], 80\ns_load_dwordx8 s[44:51], s[0:1], 48\ns_load_dwordx2 s[52:53], s[0:1], 32")
    a("""
    s_getpc_b64 s[20:21]
    v_lshrrev_b32 v1, 6, v0
    s_and_b32 s33, s2, 7
    s_lshr_b32 s35, s2, 3
    v_readfirstlane_b32 s32, v1
    v_and_b32 v1, 63, v0
    s_lshr_b32 s34, s35, 3
    s_lshl_b32 s33, s33, 2
    s_add_u32 s33, s33, s34
    s_and_b32 s34, s35, 7
    s_and_b32 s15, s35, 15
    s_lshr_b32 s14, s33, 1
    v_and_b32 v2, 15, v1
    v_lshrrev_b32 v3, 4, v1
    """)
    a("s_lshl_b32 s55, s35, 2\ns_add_u32 s55, s55, s32\ns_lshl_b32 s39, s55, 9\nv_lshl_add_u32 v20, v3, 7, s39")
    a.raw("    v_min_u32 v20, L_code_end-" + n + "-128, v20")
    a("global_load_dword v21, v20, s[20:21]")

    AX, AW, AK = 0, 80, 140
    VACC, VCSQ, VSUM, VSQ, VKC, VKS, VONE = 16, 36, 56, 60, 64, 68, 72
    VXA, VXR, VRS, VTA, VKA = 220, 224, 228, 233, 241
    L_KW, L_W1, L_Q, L_CS = 81920, 110592, 98304, 159744
    for g in range(4):
        a(f"v_add_u32 v22, {4*g}, v3\nv_xor_b32 v23, v22, v2\nv_mul_u32_u24 v22, 1280, v22\nv_lshl_add_u32 v{VXA+g}, v23, 4, v22")
        if g:
            a(f"v_subrev_u32 v{VXA+g}, {1024*g}, v{VXA+g}")
    a("""
    s_lshl_b32 s35, s33, 2
    s_add_u32 s35, s35, s32
    s_mul_i32 s54, s35, 20480
    s_mul_i32 s39, s32, 20480
    s_mov_b32 m0, s39
    v_lshlrev_b32 v4, 4, v1
    v_mov_b32 v0, 1
    s_mov_b32 s18, 20480
    s_mov_b32 s19, 0x20000
    s_waitcnt lgkmcnt(0)
    s_and_b32 s5, s5, 0xffff
    s_and_b32 s59, s59, 0xffff
    """)
    a(setbase(16, 4, "s54"))
    srd(a, 28, 58, WS_END)
    a("s_cmp_lg_u32 s55, 28\ns_cbranch_scc1 L_nz0")
    vm = a.vm
    a(f"v_mov_b32 v24, 0\nv_mov_b32 v25, 0\nv_mov_b32 v26, 0\nv_mov_b32 v27, 0\ns_and_b32 s38, s2, 7\ns_lshl_b32 s38, s38, 13\ns_add_u32 s38, s38, {FL_OFF}\ns_add_u32 s40, s38, 4096")
    for i in range(8):
        a(f"buffer_store_dwordx4 v[24:27], v4, s[28:31], s{38 if i < 4 else 40} offen offset:{1024*(i&3)} sc1")
    a.vm = vm
    a.label("L_nz0")
    xt = []
    def x_window(j):
        if j:
            a(adv(16, 256) + "\ns_sub_u32 s18, s18, 256\ns_add_u32 m0, m0, 4096")
        for g in range(4):
            t = a(f"buffer_load_dwordx4 v{VXA+g}, s[16:19], 0 offen offset:{1024*g} lds")
        xt.append(t)
    for j in range(4):
        x_window(j)
    a("s_bitcmp1_b32 s34, 1\ns_cselect_b32 s12, s10, s8\ns_cselect_b32 s13, s11, s9")
    srd(a, 24, 12, 25600)
    srd(a, 8, 56, 256)
    a("s_cmp_ge_u32 s34, 4\ns_cselect_b32 s26, 0, s26")
    a("\n".join(rows160_addr(VA160, 24)))
    a(f"""
    s_mul_i32 s38, s34, 160
    s_mul_i32 s40, s32, 40960
    s_add_u32 s38, s38, s40
    s_and_b32 s7, s7, 0xffff
    s_and_b32 s53, s53, 0xffff
    {setbase(20, 6, "s38")}
    {adv(52, "s38")}
    s_mov_b32 s22, {40960 - 1120}
    s_mov_b32 s23, 0x20000
    s_mul_i32 s41, s32, 5120
    s_add_u32 s40, s41, {L_W1}
    """)

    def w_group(g):
        o = [f"s_add_u32 m0, s40, {20480*g}" if g < 2 else f"s_add_u32 m0, s39, {5120*(g-2)}"]
        if g:
            o[0] += "\n" + adv(20, 4 * 40960)
        o += [f"buffer_load_dwordx4 v{VA160+i}, s[20:23], 0 offen offset:{1024*i} lds" for i in range(4)]
        return o + ["s_add_u32 m0, m0, 4096", tk(f"w{g}", f"buffer_load_dwordx4 v{VA160+4}, s[20:23], 0 offen lds")]
    a(f"""
    v_lshrrev_b32 v24, 2, v1
    v_mul_u32_u24 v24, 160, v24
    v_and_b32 v27, 3, v1
    v_lshl_add_u32 v24, v27, 3, v24
    v_bfe_u32 v26, v1, 2, 2
    v_lshl_add_u32 v26, v3, 3, v26
    v_mul_u32_u24 v25, 40, v26
    v_lshlrev_b32 v28, 3, v27
    s_bitcmp1_b32 s34, 0
    s_cselect_b32 s38, 0, -1
    s_cselect_b32 s42, 32, 0
    v_and_b32 v28, s38, v28
    s_add_u32 s42, s42, {L_KW}
    v_add3_u32 v25, v25, v28, s42
    v_lshl_add_u32 v29, v2, 8, s39
    """)
    for p in range(4):
        a(f"""
        s_add_u32 s38, s32, {p}
        s_and_b32 s38, s38, 3
        s_lshl_b32 s42, s38, 2
        v_add_u32 v28, s42, v3
        v_xor_b32 v28, v28, v2
        v_lshl_add_u32 v{VXR+p}, v28, 4, v29
        s_mul_i32 s42, s38, 5120
        s_add_u32 s42, s42, {L_W1}
        v_add_u32 v{VTA+p}, s42, v24
        s_mul_i32 s42, s38, 20480
        v_add_u32 v{VTA+4+p}, s42, v24
        s_mul_i32 s42, s38, 1280
        v_add_u32 v{VKA+p}, s42, v25
        """)
    a("s_mul_i32 s38, s34, 10\nv_lshrrev_b32 v24, 1, v3\nv_add_u32 v24, s38, v24\nv_and_b32 v25, 1, v3\nv_lshl_add_u32 v25, v25, 3, v29")
    for t in range(5):
        a(f"v_add_u32 v28, {2*t}, v24\nv_lshrrev_b32 v30, 4, v28\nv_and_b32 v28, 15, v28\nv_xor_b32 v28, v28, v2\nv_lshl_add_u32 v28, v28, 4, v25\nv_lshl_add_u32 v{VRS+t}, v30, 12, v28")
    for i in range(4):
        a(f"v_mov_b32 v{VONE+i}, 0x3f803f80")
    later = lines(f"""
    v_lshlrev_b32 v5, 3, v1
    v_lshlrev_b32 v9, 2, v1
    v_and_b32 v7, 31, v1
    v_lshrrev_b32 v8, 5, v1
    s_and_b32 s36, s32, 1
    v_bfe_u32 v10, v1, 2, 1
    v_bfe_u32 v11, v1, 3, 1
    s_lshr_b32 s37, s32, 1
    v_lshl_add_u32 v6, v10, 3, v27
    v_lshl_add_u32 v6, v11, 2, v6
    v_min_u32 v10, 21, v7
    v_cmp_gt_u32 vcc, 16, v7
    v_mov_b32 v{VIDX}, 0xdddddddd
    v_mul_u32_u24 v11, 384, v8
    v_cndmask_b32 v6, v10, v6, vcc
    v_lshl_add_u32 v6, v6, 4, v11
    v_add_u32 v6, 2560, v6
    v_mul_u32_u24 v28, 192, v26
    s_mul_i32 s35, s32, 48
    v_lshl_add_u32 v28, v27, 3, v28
    v_lshrrev_b32 v30, 1, v27
    s_add_u32 s35, s35, {L_REG[0]}
    v_mul_u32_u24 v30, {6144-16}, v30
    v_add_u32 v{VGT}, s35, v28
    s_lshl_b32 s35, s32, 11
    v_add_u32 v{VGT+1}, v{VGT}, v30
    v_lshlrev_b32 v255, 6, v26
    v_lshl_add_u32 v255, v27, 3, v255
    v_add_u32 v255, s35, v255
    v_lshrrev_b32 v254, 2, v1
    v_mul_u32_u24 v254, 1280, v254
    v_lshl_add_u32 v254, v27, 4, v254
    """)
    for i in range(3):
        later += lines(f"""
        v_add_u32 v28, {64*i}, v1
        v_mul_u32_u24 v30, 5462, v28
        v_lshrrev_b32 v30, 16, v30
        v_mul_u32_u24 v31, 12, v30
        v_sub_u32 v28, v28, v31
        v_mul_u32_u24 v30, 3072, v30
        v_lshl_add_u32 v{VGD+i}, v28, 4, v30
        """) + ([f"v_subrev_u32 v{VGD+i}, {1024*i}, v{VGD+i}"] if i else [])
    run(later)
    for i in range(64):
        a(f"v_mov_b32 v{VO+i}, 0")
    a("s_cmp_lg_u32 s55, 28\ns_cbranch_scc1 L_nz1")
    vm = a.vm
    a("s_waitcnt vmcnt(16)\ns_mov_b64 exec, 1\nbuffer_atomic_add v0, off, s[8:11], 0 sc1\ns_mov_b64 exec, -1")
    a.vm = vm
    a.label("L_nz1")
    stamp(a, "setup")
    x_window(4)
    a(f"s_mul_i32 s38, s32, 7168\ns_add_u32 m0, s38, {L_KW}\nv_add_u32 v22, s38, v4\nv_add_u32 v23, 4096, v22")
    kvq = [f"buffer_load_dwordx4 v22, s[24:27], 0 offen offset:{1024*i} lds" for i in range(4)] + ["s_add_u32 m0, m0, 4096"] + \
          [f"buffer_load_dwordx4 v23, s[24:27], 0 offen offset:{1024*i} lds" for i in range(3)]
    stamp(a, "issued")

    def xread(j):
        return [F(lambda: a.wait(xt[j]), 0)] + [tk(("xr", j), f"ds_read_b128 {r4('a', AX+16*j+4*p)}, v{VXR+p} offset:{4096*j}") for p in range(4)]
    run(xread(0))
    s0l = "buffer_load_dword v14, off, s[8:11], s43 sc1"
    for j in range(5):
        q = xread(j + 1) if j < 4 else w_group(2)
        if j == 3:
            q += [tk(("xr", 4), f"ds_read_b64 a[{AXR+2*t}:{AXR+2*t+1}], v{VRS+t}") for t in range(5)]
        if j < 3:
            q += [kvq, w_group(0), w_group(1)][j]
        a.wait(T["xr", j])
        for p in range(4):
            x = r4("a", AX + 16 * j + 4 * p)
            f = j == 0 and p == 0
            a(mf16(r4("v", VSUM), r4("v", VONE), x, "0" if f else r4("v", VSUM)))
            gap(a, q)
            a(mf16(r4("v", VSQ), x, x, "0" if f else r4("v", VSQ)))
            gap(a, q)
        run(q)
    stamp(a, "xdone")
    a("s_cmp_lg_u32 s32, 0\ns_cselect_b32 s43, 256, 0")
    T["s0"] = a(s0l)
    fin = lines(f"""
    s_mov_b32 s12, 0x22222222
    s_mov_b32 s13, s12
    v_mov_b32 v79, 1.0
    v_mul_f32 v76, {fbits(-0.25/640)}, v{VSUM}
    v_cndmask_b32 v{VSQ}, v{VSQ}, v{VSQ+1}, s[12:13]
    s_lshl_b64 s[12:13], s[12:13], 1
    v_cndmask_b32 v{VSQ}, v{VSQ}, v{VSQ+2}, s[12:13]
    s_lshl_b64 s[12:13], s[12:13], 1
    v_cndmask_b32 v{VSQ}, v{VSQ}, v{VSQ+3}, s[12:13]
    s_mov_b32 s12, 0x00f0000f
    s_mov_b32 s13, 0xf0000f00
    v_cndmask_b32 v77, 0, v{VSQ}, s[12:13]
    v_mul_f32 v78, 4.0, v76
    """) + [mf32(r4("v", VSQ), "v79", "v77", "0")]
    fin2 = lines(f"""
    v_mul_f32 v77, {fbits(1/640)}, v{VSQ}
    v_fma_f32 v77, -v78, v78, v77
    v_max_f32 v77, 0, v77
    v_add_f32 v77, {fbits(1e-5)}, v77
    v_rsq_f32 v77, v77
    v_mul_f32 v78, {fbits(LOG2E / math.sqrt(20))}, v77
    """)
    run(fin)
    a.wait(T["w0"])
    a("s_barrier")

    def wreads(s):
        g, p = divmod(s, 4)
        base, off = (VTA + p, g * 20480) if g < 2 else (VTA + 4 + p, (g - 2) * 5120)
        b = AW + 20 * (s % 3)
        return [tk(("q", s, t), f"ds_read_b64_tr_b16 a[{b+4*t+2*h}:{b+4*t+2*h+1}], v{base} offset:{off + 2560*h + 32*t}")
                for t in range(5) for h in range(2)]
    vm0, lg0 = a.vm, a.lg
    a("s_cmp_ge_u32 s34, 4\ns_cbranch_scc1 L_nokv")
    kq = [tk(("kw", s), f"ds_read_b64_tr_b16 a[{AK+4*s+2*h}:{AK+4*s+2*h+1}], v{VKA+(s&3)} offset:{(s>>2)*5120 + 160*h}")
          for s in range(20) for h in range(2)]
    run(kq[:12])
    run(fin2)
    a(f"""
    s_mul_i32 s38, s33, {KVB}
    s_add_u32 s38, s38, {KV_OFF}
    v_lshrrev_b32 v22, 1, v3
    v_and_b32 v23, 1, v3
    s_lshl_b32 s35, s32, 4
    v_add_u32 v24, s35, v2
    s_bitcmp1_b32 s34, 1
    s_cbranch_scc1 L_v
    """)
    vm1, lg1 = a.vm, a.lg
    for isv in range(2):
        a.vm, a.lg = vm1, lg1
        kr = list(kq[12:])
        ad = w_group(3) + [lines("""
            v_lshrrev_b32 v25, 5, v24
            v_and_b32 v26, 31, v24
            v_lshl_add_u32 v26, v22, 5, v26
            v_lshl_add_u32 v26, v25, 6, v26
            v_lshlrev_b32 v26, 4, v26
            v_lshl_add_u32 v26, v23, 3, v26
            v_lshlrev_b32 v24, 3, v24
            v_add_u32 v24, 2048, v24
            """) + ["s_bitcmp1_b32 s34, 0\ns_cselect_b64 vcc, -1, 0\ns_cselect_b64 s[12:13], 0xffff, -1",
                    "v_cndmask_b32 v24, v26, v24, vcc"],
            lines("""
            v_mul_u32_u24 v24, 384, v22
            v_lshl_add_u32 v24, v23, 3, v24
            s_mul_i32 s35, s32, 768
            v_lshl_add_u32 v24, v2, 4, v24
            v_mul_f32 v26, 0.25, v77
            s_add_u32 s35, s35, 2560
            v_cmp_eq_u32 vcc, 4, v2
            """.replace("0.25", fbits(0.25))) + [
                "s_bitcmp1_b32 s34, 0\ns_cselect_b32 s42, 256, 0\ns_cselect_b32 s12, 0x00ff00ff, -1\ns_cselect_b32 s26, 0x00f000f0, 0",
                f"v_cndmask_b32 v25, 0, v{VONE}, vcc", "s_add_u32 s35, s35, s42", "v_add_u32 v24, s35, v24", "s_mov_b32 s13, s12", "s_mov_b32 s27, s26"]][isv]
        a.wait(T["kw", 0])
        for s in range(20):
            w, x = r4("a", AK + 4 * s), r4("a", AX + 4 * s)
            a(mf16(r4("v", VKC), x if isv else w, w if isv else x, "0" if s == 0 else r4("v", VKC)))
            gap(a, kr if kr else ad)
            a(mf16(r4("v", VKS), r4("v", VONE), w, "0" if s == 0 else r4("v", VKS)))
            if s < 19:
                a.wait(T["kw", s + 1])
            gap(a, ad, 2, 0 if s < 19 else 1)
        run(ad)
        if isv:
            a(mf32(r4("v", 28), "v26", "v79", "0"))
            a(mf32(r4("v", VKC), "v76", f"v{VKS}", r4("v", VKC)))
        else:
            a(mf32(r4("v", VKC), f"v{VKS}", "v76", r4("v", VKC)))
        rq = []
        for s in range(2):
            rq += wreads(s)
        run(rq[:12])
        for r in range(4):
            a(f"v_mul_f32 v{VKC+r}, v{VKC+r}, v{28+r if isv else 77}")
        a(f"v_cvt_pk_bf16_f32 v{VKC}, v{VKC}, v{VKC+1}\nv_cvt_pk_bf16_f32 v{VKC+1}, v{VKC+2}, v{VKC+3}")
        if isv:
            a(f"v_cndmask_b32 v{VKC}, v{VKC}, v25, s[26:27]\nv_cndmask_b32 v{VKC+1}, v{VKC+1}, v25, s[26:27]")
        a("s_mov_b64 exec, s[12:13]")
        T["kvst"] = a(f"buffer_store_dwordx2 v[{VKC}:{VKC+1}], v24, s[28:31], s38 offen sc1")
        a("s_mov_b64 exec, -1\ns_branch L_q")
        a.label("L_nokv" if isv else "L_v")
    vm2, lg2 = a.vm, a.lg
    keep = dict(T)
    a.vm, a.lg = vm0, lg0
    run(w_group(3))
    run(rq[:12])
    run(fin2)
    a(f"s_mov_b32 s38, {WS_END}\nbuffer_store_dword v0, off, s[28:31], s38")
    a.label("L_q")
    a.vm, a.lg = vm2, lg2
    T.update(keep)
    stamp(a, "kvdone")
    rq = rq[12:]
    SIG = opt("sig", 2)
    for s in range(2, 20):
        if s % 4 == 0:
            def sync(g=s // 4):
                if g == SIG:
                    assert not oq1
                    a("s_cmp_lg_u32 s32, 0\ns_cbranch_scc1 L_s0_ok")
                    poll(a, "s0", s0l, "v_cmp_gt_u32 vcc, 8, v14", T["s0"])
                a.wait(T[f"w{g}"], T["kvst"] if g == SIG else None)
                a("s_barrier")
                if g == SIG:
                    a("s_mov_b64 exec, 1\nbuffer_store_dword v0, off, s[28:31], s42 sc1\ns_mov_b64 exec, -1")
            rq.append(F(sync, 0))
        rq += wreads(s)
    oq = w_group(4) + lines(f"""
    s_lshl_b32 s42, s33, 8
    s_lshr_b32 s35, s34, 1
    s_lshl_b32 s35, s35, 7
    s_add_u32 s42, s42, s35
    s_and_b32 s35, s34, 1
    s_lshl_b32 s35, s35, 2
    s_add_u32 s42, s42, s35
    s_add_u32 s42, s42, {FL_OFF + FL_K}
    """) + [f"s_cmp_ge_u32 s34, 4\ns_cselect_b32 s42, {WS_END}, s42", f"s_cmp_lg_u32 s32, 0\ns_cselect_b32 s42, {WS_END}, s42"]
    oq1 = oq
    oq2 = lines(f"""
    s_mul_i32 s35, s32, {16*168}
    v_mul_u32_u24 v144, 168, v2
    v_lshl_add_u32 v144, v3, 3, v144
    s_add_u32 s35, s35, {L_Q}
    v_add_u32 v12, s35, v144
    v_mul_u32_u24 v144, 168, v7
    s_mul_i32 s35, s37, {32*168}
    v_lshlrev_b32 v13, 7, v1
    v_lshlrev_b32 v145, 2, v2
    s_add_u32 s35, s35, {L_Q}
    v_add_u32 v144, s35, v144
    v_mul_u32_u24 v146, 320, v3
    s_mul_i32 s38, s36, 80
    v_add_u32 v{VXA+2}, s38, v144
    v_lshl_add_u32 v{VXA+3}, v8, 4, v{VXA+2}
    s_sub_u32 s38, 80, s38
    v_add_u32 v{VXA}, s38, v144
    v_lshl_add_u32 v{VXA+1}, v8, 4, v{VXA}
    s_mul_i32 s35, s32, 320
    v_add_u32 v145, {L_CS}, v145
    v_add_u32 v{VXR+1}, v145, v146
    v_add_u32 v{VXR}, s35, v145
    v_mul_f32 v76, 4.0, v76
    s_mul_i32 s35, s36, {16*KVB}
    """) + [f"s_add_u32 s35, s35, {KV_OFF}", setbase(24, 58, "s35"), f"s_mov_b32 s26, {KVB}", "s_mov_b32 s27, 0x20000",
            f"s_mov_b32 s39, {FL_OFF + FL_K}", f"s_cmp_lg_u32 s32, 0\ns_cselect_b32 s39, {WS_END}, s39"]
    s1l = "buffer_load_dwordx2 v[146:147], v13, s[28:31], s39 offen sc1"
    csq = [tk("csw", f"ds_write_b32 v{VXR}, v{VCSQ+4*t} offset:{64*t}") for t in range(5)] + [None, None, None,
          F(lambda: (a.wait(T["csw"]), a("s_barrier")), 0)] + \
          [tk("cs", f"ds_read_b32 v{VCSQ+4*t}, v{VXR+1} offset:{64*t}") for t in range(5)]
    a.wait(T["q", 0, 0])
    for s in range(20):
        b = AW + 20 * (s % 3)
        if s == 9:
            run(oq)
            oq = oq2
        if s == 17:
            run(oq)
            oq = csq
        for t in range(5):
            c = r4("v", VACC + 4 * t)
            w = r4("a", b + 4 * t)
            if s % 4 == 0:
                cs = r4("v", VCSQ + 4 * t)
                a(mf16(cs, r4("v", VONE), w, "0" if s == 0 else cs))
                gap(a, oq)
            a(mf16(c, w, r4("a", AX + 4 * s), "0" if s == 0 else c))
            i = 5 * s + t + 1
            if i < 100:
                a.wait(T["q", i // 5, i % 5])
            if s >= 17 and oq:
                emit(a, oq.pop(0))
            k = 0
            while rq and k < 2:
                x = rq.pop(0)
                x()
                k += x.c
    run(oq)
    stamp(a, "mainend")
    T["s1"] = a(s1l)
    a.wait(T["cs"])
    for t in range(5):
        a(mf32(r4("v", VACC + 4 * t), f"v{VCSQ+4*t}", "v76", r4("v", VACC + 4 * t)))
    a(f"""
    s_cmp_ge_u32 s32, 2
    s_cselect_b32 s12, s46, s44
    s_cselect_b32 s13, s47, s45
    s_and_b32 s13, s13, 0xffff
    s_mul_i32 s38, s15, 192
    s_mul_i32 s35, s36, {16*3072}
    s_add_u32 s38, s38, s35
    {setbase(16, 12, "s38")}
    s_mov_b32 s18, {15*3072 + 192}
    s_mul_i32 s40, s32, 3072
    """)
    for t in range(5):
        c = VACC + 4 * t
        for r in range(4):
            a(f"v_mul_f32 v{c+r}, v78, v{c+r}")
        a(f"v_cvt_pk_bf16_f32 v{c}, v{c}, v{c+1}\nv_cvt_pk_bf16_f32 v{c+1}, v{c+2}, v{c+3}")
        a(f"ds_write_b64 v12, v[{c}:{c+1}] offset:{32*t}")
    a("s_cmp_lg_u32 s32, 0\ns_cbranch_scc1 L_s1_ok")
    poll(a, "s1", s1l, "v_and_b32 v146, v146, v147\nv_cmp_eq_u32 vcc, 0, v146", T["s1"])
    a("s_waitcnt lgkmcnt(0)\ns_barrier")
    stamp(a, "s1")

    def kloads(b):
        k = kreg(b)
        return [f"buffer_load_dwordx4 v[{k}:{k+3}], v4, s[24:27], 0 offen sc1",
                f"buffer_load_dwordx4 v[{k+4}:{k+7}], v4, s[24:27], 0 offen offset:1024 sc1",
                tk(("k", b), f"buffer_load_dwordx2 v[{k+8}:{k+9}], v5, s[24:27], 0 offen offset:2048 sc1")]

    def vloads(b):
        v = vreg(b)
        return [tk(("v", b), f"buffer_load_dwordx4 v[{v+4*j}:{v+4*j+3}], v6, s[24:27], 0 offen offset:{768*j} sc1") for j in range(4)]
    KINC = adv(24, KVB)
    run(kloads(0))
    for p in range(2):
        a(f"""
        ds_read2_b64 v[{VQ+12*p}:{VQ+12*p+3}], v{VXA+1+2*p} offset0:0 offset1:1
        ds_read2_b64 v[{VQ+12*p+4}:{VQ+12*p+7}], v{VXA+1+2*p} offset0:5 offset1:6
        ds_read2_b64 v[{VQ+12*p+8}:{VQ+12*p+11}], v{VXA+2*p} offset0:4 offset1:9
        """)
    run(vloads(0) + [KINC] + kloads(1) + vloads(1) + [KINC])
    srd(a, 20, 48, 1536 * 640 * 2)
    a(f"""
    s_mul_i32 s8, s2, 13108
    s_lshr_b32 s8, s8, 16
    s_mul_i32 s9, s8, 5
    s_sub_u32 s9, s2, s9
    s_mul_i32 s8, s8, 40960
    s_lshl_b32 s9, s9, 8
    s_add_u32 s8, s8, s9
    s_lshl_b32 s9, s32, 6
    s_add_u32 s8, s8, s9
    s_add_u32 s9, s8, {16*1280 - 1024}
    s_lshl_b32 m0, s32, 11
    s_getreg_b32 s10, hwreg(HW_REG_XCC_ID, 0, 4)
    s_add_u32 s10, s10, 1
    s_lshl_b32 s11, s14, 8
    s_add_u32 s11, s11, {FL_OFF + FL_XCC}
    s_lshl_b32 s35, s15, 2
    s_add_u32 s35, s35, s11
    s_cmp_lg_u32 s32, 0
    s_cselect_b32 s35, {WS_END}, s35
    v_mov_b32 v14, s10
    s_waitcnt lgkmcnt(0)
    """)
    a.wait(T["k", 0])
    a(qk4(SA, kreg(0), 0))
    run(kloads(2) + vloads(2))
    a("buffer_load_dwordx4 v254, s[20:23], s8 offen lds")
    T["dj"] = a("buffer_load_dwordx4 v254, s[20:23], s9 offen offset:1024 lds")
    a("s_mov_b64 exec, 1\nbuffer_store_dword v14, off, s[28:31], s35 sc1\ns_mov_b64 exec, -1")
    a(qk16(SA, kreg(0), 0, 0))
    a(qk16(SA, kreg(0), 0, 1))
    a.wait(T["v", 0])
    stamp(a, "loop0")

    FREE = [(t, k) for t in range(4) for k in range(6)]
    PVS = (0, 1, 2, 5)
    WD0, WD1 = opt("wd0", 12), opt("wd1", 23)
    a.raw(".p2align 3")
    for blk in range(16):
        sl = {}
        def put(pos, items):
            sl.setdefault(pos, []).extend(items)
        def spread(items, start, pvonly=False):
            i = FREE.index(start)
            for it in items:
                while FREE[i] in sl or (pvonly and FREE[i][1] not in PVS):
                    i += 1
                put(FREE[i], it if isinstance(it, list) else [it])
            return FREE[i]
        if 1 <= blk <= 13:
            vl = vloads(blk + 2)
            put((0, 0), vl[:2])
            put((0, 2), vl[2:])
        if blk < 15:
            put((3, 0), [wt(("k", blk + 1))])
            put((3, 5), [wt(("v", blk + 1))])
        if blk <= 12:
            put((0, 5), [KINC])
            put((3, 1), kloads(blk + 3))
        if blk in (4, 6, 8, 10, 12, 14):
            names = [("g", 2 * blk - 5)] if blk < 14 else []
            if blk == 6:
                names.append("djst")
            def sync(names=names):
                a.wait(("lg", a.lg), *[T[x] for x in names])
                a("s_barrier")
            put((0, 1), [F(sync, 0)])
        if blk < 10:
            for h in range(2):
                s = 2 * blk + h
                if s:
                    put((1 + h, 0), [adv(16, 98304)])
                put((h, 4), [f"s_add_u32 m0, s40, {L_REG[s // 4] + 12288 * (s & 3)}"])
                put((1 + h, 1), [tk(("g", s), f"buffer_load_dwordx4 v{VGD+i}, s[16:19], 0 offen offset:{1024*i} lds") for i in range(3)])
        wog = {10: [0], 11: [1], 12: [2, 3], 13: [4]}.get(blk, [])
        for i, g in enumerate(wog):
            tl = 1 + i
            ld = [f"buffer_load_dwordx4 v{VA160+k}, s[20:23], 0 offen offset:{1024*k} lds" for k in range(4)]
            put((tl - 1, 4), [f"s_add_u32 m0, s41, {20480*g + 4096}"])
            put((tl, 0), [setbase(20, 52, 4 * 40960 * g)])
            put((tl, 1), [f"buffer_load_dwordx4 v{VA160+4}, s[20:23], 0 offen lds", "s_sub_u32 m0, m0, 4096", ld[0]])
            put((tl, 2), ld[1:3] + [tk("wo", ld[3])])
        if 4 <= blk < 14:
            rd = []
            G = (blk - 4) // 2
            if blk % 2 == 0 and G:
                d = L_REG[G] - L_REG[G - 1]
                op = f"v_add_u32 v{{r}}, {d}, v{{r}}" if d > 0 else f"v_subrev_u32 v{{r}}, {-d}, v{{r}}"
                put((0, 1), [op.format(r=VGT), op.format(r=VGT + 1)])
            for h2 in range(2):
                s = 2 * (blk - 4) + h2
                for t in range(3):
                    for h in range(2):
                        d = 12 * s + 4 * t + 2 * h
                        base, off = (VGT, 6144 * t) if t < 2 else (VGT + 1, 32)
                        rd.append(f"ds_read_b64_tr_b16 a[{d}:{d+1}], v{base} offset:{12288*(s&3) + off + 768*h}")
            for pos in ((0, 5), (1, 0), (2, 0), (3, 0), (3, 5)):
                put(pos, [rd.pop()])
            spread(rd, (0, 3))
        if blk == 1:
            spread([[x] for x in ["s_and_b32 s9, s2, 7", "s_lshl_b32 s9, s9, 8", f"s_add_u32 s9, s9, {FL_OFF + FL_W}",
                                  f"s_cmp_lg_u32 s32, 0\ns_cselect_b32 s9, {WS_END}, s9", "v_lshlrev_b32 v254, 2, v2",
                                  f"s_mov_b32 s22, {40960 - 1120}"]], (0, 1))
        if blk == 2:
            p = spread([[wt("dj")]] + [tk("djr", f"ds_read_b64_tr_b16 a[{232+4*u+2*h}:{233+4*u+2*h}], v255 offset:{32*u+256*h}")
                                       for u in range(2) for h in range(2)]
                       + [["s_lshl_b32 s8, s2, 2", "s_add_u32 s8, s8, s32"], ["s_lshl_b32 s8, s8, 11"], [f"s_add_u32 s8, s8, {WD_OFF}"], [wt("djr")]], (0, 1))
            spread([[tk("djst", f"buffer_store_dwordx4 a[{232+4*u}:{235+4*u}], v4, s[28:31], s8 offen offset:{1024*u} sc1") for u in range(2)]], p, True)
        if blk == 3:
            tq = ["s_lshl_b32 s44, s33, 2", "s_lshl_b32 s45, s37, 1", "s_add_u32 s44, s44, s45", "s_mul_i32 s44, s44, 20480",
                  "s_mul_i32 s45, s34, 2560", "s_add_u32 s44, s44, s45", "s_mul_i32 s35, s36, 1280", "s_add_u32 s44, s44, s35",
                  f"s_add_u32 s44, s44, {OF_OFF}", "s_add_u32 s45, s45, s54", f"s_add_u32 s45, s45, {HF_OFF}",
                  "s_lshl_b32 s46, s15, 2", "s_add_u32 s46, s46, s32", "s_mul_i32 s46, s46, 768", f"s_mul_i32 s35, s14, {8*49152}",
                  "s_add_u32 s46, s46, s35", f"s_add_u32 s46, s46, {AF_OFF}",
                  "s_lshr_b32 s47, s55, 5", f"s_mul_i32 s47, s47, {12*40960}", "s_and_b32 s35, s55, 31", "s_mul_i32 s35, s35, 6400",
                  "s_add_u32 s47, s47, s35", f"s_add_u32 s47, s47, {WD_OFF}"]
            spread([tq[i:i + 2] for i in range(0, len(tq), 2)], (0, 1))
        if blk == 6:
            put((3, 1), ["s_mov_b64 exec, 1", "buffer_atomic_add v0, off, s[28:31], s9 sc1", "s_mov_b64 exec, -1"])
        if blk == 8:
            put((3, 1), [tk("xcc", "buffer_load_dword v14, v254, s[28:31], s11 offen sc1")])
        if blk == 9:
            def xpoll():
                poll(a, "x", "buffer_load_dword v14, v254, s[28:31], s11 offen sc1", "v_cmp_eq_u32 vcc, 0, v14", T["xcc"])
                a("v_cmp_ne_u32 vcc, s10, v14\nv_and_b32 v254, 7, v1\ns_cmp_eq_u64 vcc, 0\ns_cselect_b32 s61, 1, 0")
                if "global" in OPT:
                    a("s_mov_b32 s61, 0")
                a(f"v_lshlrev_b32 v254, 8, v254\ns_mov_b32 s9, {FL_OFF + FL_W}")
            put((3, 0), [F(xpoll, 0)])
            put((3, 1), [tk("wfl", "buffer_load_dword v14, v254, s[28:31], s9 offen sc1")])
        if blk == 10:
            def wpoll():
                poll(a, "w", "buffer_load_dword v14, v254, s[28:31], s9 offen sc1", "v_cmp_gt_u32 vcc, 32, v14", T["wfl"])
                a("v_min_u32 v254, 24, v1\nv_lshlrev_b32 v254, 7, v254")
            put((3, 0), [F(wpoll, 0)])
        if blk in (10, 11) and "nodt" not in OPT:
            put((3, 1), [f"buffer_load_dword v14, v254, s[28:31], s47 offen offset:{3200*(blk-10)} sc1"])
        if blk == 14:
            tv = ["s_lshl_b32 s8, s14, 11", "v_lshlrev_b32 v10, 7, v2", f"s_add_u32 s8, s8, {FL_OFF+FL_A}", "v_lshlrev_b32 v11, 7, v3",
                  "s_lshl_b32 s9, s14, 9", f"s_add_u32 s9, s9, {FL_OFF+FL_O}", "s_lshl_b32 s38, s14, 8", f"s_add_u32 s38, s38, {FL_OFF+FL_H}"]
            tl_ = ["buffer_load_dword v14, v10, s[28:31], s8 offen sc1", "buffer_load_dword v14, v11, s[28:31], s9 offen sc1",
                   "buffer_load_dword v14, v9, s[28:31], s38 offen sc1"]
            if LOC_O:
                tv += ["v_min_u32 v12, 9, v7", "v_lshlrev_b32 v12, 7, v12", "v_mul_u32_u24 v13, 20480, v8", "v_add_u32 v12, v12, v13"]
                tl_ += ["buffer_load_dword v14, v12, s[28:31], s44 offen sc1"]
            if LOC_H:
                tv += ["v_min_u32 v13, 19, v1", "v_lshlrev_b32 v13, 7, v13", "s_lshl_b32 s11, s14, 13", f"s_add_u32 s11, s11, {ST_OFF}",
                       "s_lshl_b32 s35, s32, 11", "s_add_u32 s11, s11, s35"]
                tl_ += ["buffer_load_dword v14, v13, s[28:31], s45 offen sc1", "buffer_load_dword v14, v10, s[28:31], s11 offen sc1"]
            if LOC_A:
                tv += ["v_and_b32 v252, 7, v1", "v_min_u32 v252, 5, v252", "v_lshlrev_b32 v252, 7, v252", "v_lshrrev_b32 v253, 3, v1",
                       "v_mul_u32_u24 v253, 49152, v253", "v_add_u32 v252, v252, v253"]
                tl_ += ["buffer_load_dword v14, v252, s[28:31], s46 offen sc1"]
            p = spread([tv[i:i + 2] for i in range(0, len(tv), 2)], (0, 0))
            spread([tl_[i:i + 4] for i in range(0, len(tl_), 4)], p, True)
        if blk == 15:
            ex = ["s_mul_i32 s8, s32, 6144", f"s_add_u32 s8, s8, {L_E}", "v_add_u32 v12, s8, v4",
                  "s_xor_b32 s9, s32, 1", "s_mul_i32 s9, s9, 6144", "v_lshrrev_b32 v10, 4, v7",
                  f"s_add_u32 s9, s9, {L_E}", "s_lshl_b32 s38, s33, 1", "v_add_u32 v13, s9, v4",
                  "s_add_u32 s38, s38, s37", "s_lshl_b32 s38, s38, 7", "v_mul_u32_u24 v10, 20480, v10",
                  f"s_add_u32 s38, s38, {FL_OFF+FL_O}", "s_lshl_b32 s39, s34, 1", "v_lshl_add_u32 v10, v2, 4, v10",
                  "s_add_u32 s39, s39, s36", "s_lshl_b32 s39, s39, 2", "v_lshl_add_u32 v10, v8, 8, v10",
                  "s_add_u32 s39, s39, s38", f"s_mov_b32 s8, {fbits(2.0**-60)}", "v_lshlrev_b32 v11, 2, v2",
                  f"s_mov_b32 s9, {fbits(2.0**60)}", "s_mov_b32 s35, 0"]
            for t in range(2):
                for j in range(3):
                    o = VO + 16 * t + 4 * j
                    put((1 + t, 2 + j), [f"ds_write_b128 v12, v[{o}:{o+3}] offset:{3072*t + 1024*j}"])
            put((3, 0), [F(lambda: (a.wait(T["wo"], ("lg", a.lg)), a("s_barrier")), 0)])
            for t in range(2):
                put((3, 1 + t), [f"ds_read_b128 v[{SA+16*t+4*j}:{SA+16*t+4*j+3}], v13 offset:{3072*t + 1024*j}" for j in range(3)])
            spread([ex[i:i + 3] for i in range(0, len(ex), 3)], (0, 0), True)
        for tile in range(4):
            att_half(a, blk, tile, sl)
        assert not sl, (blk, sl)
        stamp(a, f"b{blk}")
    a(pv(3, vreg(15) + 12, SB + 24))
    stamp(a, "loop1")
    a("s_waitcnt lgkmcnt(0)")
    for t in range(2):
        o, s = VO + 32 + 16 * t, SA + 16 * t
        for r in range(12):
            a(f"v_add_f32 v{o+r}, v{o+r}, v{s+r}")
    a.label("L_norm")
    for t in range(2):
        o = VO + 32 + 16 * t
        a(f"v_mov_b32 v{o+12}, v{o+8}\nv_mov_b32 v{o+13}, v{o+8}")
    for t in range(2):
        o = VO + 32 + 16 * t
        a(f"v_permlane32_swap_b32 v{o+12}, v{o+13}")
    l0, l1 = VO + 45, VO + 61
    a(f"""
    v_cmp_le_f32 vcc, s8, v{l0}
    v_cmp_ge_f32 s[10:11], s9, v{l0}
    v_cmp_le_f32 s[12:13], s8, v{l1}
    v_cmp_ge_f32 s[42:43], s9, v{l1}
    v_rcp_f32 v{l0}, v{l0}
    v_rcp_f32 v{l1}, v{l1}
    s_and_b64 vcc, vcc, s[10:11]
    s_and_b64 s[12:13], s[12:13], s[42:43]
    s_and_b64 vcc, vcc, s[12:13]
    s_cmp_eq_u64 vcc, -1
    s_cbranch_scc0 L_safe
    """)
    a.label("L_norm2")
    P0 = SB
    for t in range(2):
        o = VO + 32 + 16 * t
        for r in range(0, 12, 2):
            a(f"v_pk_mul_f32 v[{o+r}:{o+r+1}], v[{o+r}:{o+r+1}], v[{o+12}:{o+13}] op_sel:[0,1] op_sel_hi:[1,1]")
    oa, ob = VO + 32, VO + 48
    for j in range(2):
        a(f"v_cvt_pk_bf16_f32 v{P0+6+j}, v{ob+2*j}, v{ob+2*j+1}\nv_cvt_pk_bf16_f32 v{P0+10+j}, v{ob+8+2*j}, v{ob+9+2*j}")
    for j in range(4):
        a(f"v_cvt_pk_bf16_f32 v{P0+j}, v{oa+2*j}, v{oa+2*j+1}")
    a(f"v_permlane32_swap_b32 v{P0+6}, v{P0+10}\nv_permlane32_swap_b32 v{P0+7}, v{P0+11}\nv_cmp_lt_u32 vcc, 31, v1")
    for j in range(2):
        a(f"v_cvt_pk_bf16_f32 v{P0+4+j}, v{oa+8+2*j}, v{oa+9+2*j}\nv_cvt_pk_bf16_f32 v{P0+8+j}, v{ob+4+2*j}, v{ob+5+2*j}")
    for j in range(2):
        a(f"v_cndmask_b32 v{P0+10+j}, v{P0+10+j}, v{P0+6+j}, vcc")
    ost = dual(a, [f"buffer_store_dwordx4 v[{P0}:{P0+3}], v10, s[28:31], s44 offen",
                   f"buffer_store_dwordx4 v[{P0+8}:{P0+11}], v10, s[28:31], s44 offen offset:768",
                   "s_mov_b32 exec_hi, 0",
                   f"buffer_store_dwordx4 v[{P0+4}:{P0+7}], v10, s[28:31], s44 offen offset:512",
                   "s_mov_b32 exec_hi, -1"], LOC_O)
    stamp(a, "ostored")

    def safe_path():
        a.label("L_safe")
        a("s_cmp_lg_u32 s35, 0\ns_cbranch_scc1 L_norm2\ns_mov_b32 s35, 1")
        k, v, m = kreg(0), vreg(0), kreg(1)
        a(f"v_mov_b32 v{m}, 0xff800000\nv_mov_b32 v{m+1}, 0xff800000")
        for ps in range(2):
            a(setbase(24, 58, KV_OFF) + "\ns_mov_b32 s40, 32")
            a.label(f"L_safe{ps}")
            run(kloads(0) + (vloads(0) if ps else []))
            a(f"{KINC}\ns_waitcnt vmcnt(0)")
            for t in range(2):
                a(qk4(SA + 32 * t, k, 2 + t))
            for t in range(2):
                a(qk16(SA + 32 * t, k, 2 + t, 0))
                a(qk16(SA + 32 * t, k, 2 + t, 1))
            for t in range(2):
                s = SA + 32 * t
                if ps == 0:
                    for i in range(0, 32, 2):
                        a(f"v_max3_f32 v{m+t}, v{s+i}, v{s+i+1}, v{m+t}")
                else:
                    for i in range(32):
                        a(f"v_sub_f32 v{s+i}, v{s+i}, v{m+t}")
                    for i in range(32):
                        a(f"v_exp_f32 v{s+i}, v{s+i}")
                    for j in range(4):
                        a(pv(2 + t, v + 4 * j, s + 8 * j))
            a(f"s_nop 7\ns_nop 7\ns_sub_u32 s40, s40, 1\ns_cmp_lg_u32 s40, 0\ns_cbranch_scc1 L_safe{ps}")
            if ps == 0:
                for t in range(2):
                    a(f"v_mov_b32 v{m+2}, v{m+t}\nv_permlane32_swap_b32 v{m+t}, v{m+2}\nv_max_f32 v{m+t}, v{m+t}, v{m+2}")
                for i in range(32):
                    a(f"v_mov_b32 v{VO+32+i}, 0")
        a("s_branch L_norm")
    a.cold.append(safe_path)

    NW = 16
    VCS = 108
    VX, VACC, VW, VONE = 16, 124, 144, 100
    wdreg = [208 + 4 * i for i in range(12)] + [164 + 4 * i for i in range(11)] + [132 + 4 * i for i in range(8)]
    NWR, NWL = 30, 25
    AACT, NACT, AWD = 0, 31, 124
    V4K = 120
    def wd_op(f):
        if f < NWR or f == 55:
            return r4("v", wdreg[min(f, NWR)])
        return r4("a", AWD + 4 * (f - NWR - (f > 55)))
    def wd_items(lo, hi, lds=False):
        o = []
        for f in range(lo, hi):
            ks, t = divmod(f, 5)
            sc = []
            if lds and (t in (0, 4) or f == lo):
                sc.append(f"s_add_u32 m0, s47, {(f - NWR) * 1024}")
            if t == 0 or f == lo:
                sc.append(setbase(20, 52, ks * 40960))
            if sc:
                o.append("\n".join(sc))
            va = f"v{V4K if t == 4 else 4}"
            o.append(tk(("wd", f), f"buffer_load_dwordx4 {'' if lds else wd_op(f) + ', '}{va}, s[20:23], 0 offen offset:{1024*(t&3)} sc1{' lds' if lds else ''}"))
        return o
    a(f"""
    s_mul_i32 s12, s32, {12*40960}
    s_mul_i32 s35, s34, 5120
    s_add_u32 s12, s12, s35
    s_add_u32 s12, s12, {WD_OFF}
    {setbase(52, 58, "s12")}
    s_mov_b32 s22, 5120
    v_add_u32 v{V4K}, 4096, v4
    v_mov_b32 v{VONE}, 0x3f803f80
    v_mov_b32 v{VONE+1}, 0x3f803f80
    v_mov_b32 v{VONE+2}, 0x3f803f80
    v_mov_b32 v{VONE+3}, 0x3f803f80
    """)
    wq = []
    for i in range(100):
        s, t = divmod(i, 5)
        d = VW + 4 * (i % NW)
        wq += [tk(("o", i), f"ds_read_b64_tr_b16 v[{d+2*h}:{d+2*h+1}], v{12 + (s >= 10)} offset:{(s % 10)*5120 + 2560*h + 32*t}") for h in range(2)]
    pre = wd_items(0, WD0) + lines(f"""
    s_add_u32 s12, s54, {OF_OFF}
    v_lshrrev_b32 v12, 2, v1
    v_mul_u32_u24 v12, 160, v12
    s_mov_b32 s18, 4096
    v_and_b32 v13, 3, v1
    v_lshl_add_u32 v12, v13, 3, v12
    """) + [setbase(16, 58, "s12"), "v_add_u32 v13, 51200, v12"] + [wq.pop(0) for _ in range(2 * (NW - 1))]
    for i in range(10):
        pre += [f"v_accvgpr_read_b32 v{96+(i&1)}, a{AXR+i}", f"v_lshlrev_b32 v{VACC+2*i}, 16, v{96+(i&1)}", f"v_and_b32 v{VACC+2*i+1}, 0xffff0000, v{96+(i&1)}"]
    pre += lines(f"""
    s_lshl_b32 s35, s33, 2
    v_lshrrev_b32 v96, 1, v3
    v_and_b32 v97, 1, v3
    s_add_u32 s35, s35, s32
    v_lshlrev_b32 v6, 4, v2
    v_lshl_add_u32 v10, v96, 8, v6
    s_lshl_b32 s56, s35, 10
    v_lshl_add_u32 v7, v97, 3, v10
    v_lshl_add_u32 v10, v97, 9, v10
    s_lshl_b32 s12, s34, 7
    v_lshl_add_u32 v6, v97, 3, v6
    s_add_u32 s56, s56, s12
    s_add_u32 s56, s56, {ST_OFF}
    s_lshl_b32 s42, s14, 8
    s_add_u32 s42, s42, {FL_OFF+FL_H}
    s_and_b32 s35, s35, 7
    s_lshl_b32 s35, s35, 5
    s_lshl_b32 s43, s34, 2
    s_add_u32 s43, s43, s35
    s_add_u32 s43, s43, s42
    """)
    def colsum(lo, hi, q):
        for s in range(lo, hi):
            for t in range(3):
                c = r4("v", VCS + 4 * t)
                a(mf16(c, r4("a", 12 * s + 4 * t), r4("v", VONE), "0" if s == 0 else c))
                gap(a, q)
    C1 = opt("c1", 6 if LOC_O else 11)
    colsum(0, C1, pre)
    a.wait(ost)
    flag(a, "s39")
    opl = "buffer_load_dword v14, v11, s[28:31], s38 offen sc1"
    colsum(C1, C1 + 3, pre)
    t1 = a(opl)
    colsum(C1 + 3, C1 + 6, pre)
    poll(a, "o", opl, "v_cmp_eq_u32 vcc, 0, v14", t1)
    stamp(a, "oflag")
    assert ("o", 0) in T
    oq = []
    for s in range(20):
        if s & 3 == 0 and s:
            oq.append(adv(16, 4096))
        oq.append(tk(("x", s), f"buffer_load_dwordx4 {r4('v', VX+4*s)}, v4, s[16:19], 0 offen offset:{1024*(s&3)} sc1"))
    run(oq[:19])
    oq = oq[19:]
    colsum(C1 + 6, 20, pre)
    run(pre)
    a.wait(T["x", 0], T["o", 0])
    for s in range(20):
        for t in range(5):
            i = 5 * s + t
            c = r4("v", VACC + 4 * t)
            a(mf16(c, r4("v", VW + 4 * (i % NW)), r4("v", VX + 4 * s), c))
            if i < 99:
                a.wait(T["o", i + 1], T["x", s + 1] if t == 4 else None)
            if oq and t == 1:
                popmem(oq)
            elif wq and 100 - len(wq) // 2 < i + NW:
                run([wq.pop(0), wq.pop(0)])
    stamp(a, "womain")
    H = 16
    a(f"v_mov_b32 v{H+12}, 0\nv_mov_b32 v{H+13}, 0")
    for i in range(10):
        a(f"v_cvt_pk_bf16_f32 v{H+i}, v{VACC+2*i}, v{VACC+2*i+1}")
    for p in range(2):
        b = H + 4 * p
        a(f"v_permlane16_swap_b32 v{b}, v{b+2}\nv_permlane16_swap_b32 v{b+1}, v{b+3}")
    dual(a, [f"buffer_store_dwordx4 v[{H}:{H+3}], v10, s[28:31], s45 offen",
             f"buffer_store_dwordx4 v[{H+4}:{H+7}], v10, s[28:31], s45 offen offset:1024",
             f"buffer_store_dwordx2 v[{H+8}:{H+9}], v7, s[28:31], s45 offen offset:2048"], LOC_H)
    for i in range(10):
        a(f"v_dot2c_f32_bf16 v{H+12}, v{H+i}, v{VONE}\nv_dot2c_f32_bf16 v{H+13}, v{H+i}, v{H+i}")
    a("\n".join(weave([xreduce4(H + 12, H + 14), xreduce4(H + 13, H + 15)])))
    hst = dual(a, ["s_mov_b64 exec, 0xffff", f"buffer_store_dwordx2 v[{H+12}:{H+13}], v5, s[28:31], s56 offen", "s_mov_b64 exec, -1"], LOC_H)
    stamp(a, "hstored")

    VF, NF, VC, VG, VT_ = 16, 6, 40, 64, 72
    VST, VMX, VK_, VPK = 76, 92, 100, 124
    VS = 132
    VPW, VPR, VOUT, VHA = 121, 122, 123, 130
    order = [0, 4, 1, 5, 2, 6, 3, 7]
    run(wd_items(WD0, WD1))
    a(f"""
    s_mul_i32 s12, s14, {8*20480}
    s_add_u32 s12, s12, s41
    s_add_u32 s12, s12, {HF_OFF}
    {setbase(48, 58, "s12")}
    s_mov_b32 s18, 5120
    s_add_u32 s41, s41, {L_E}
    v_add_u32 v13, {L_E}, v4
    s_lshl_b32 s12, s14, 13
    s_add_u32 s12, s12, {ST_OFF}
    {setbase(24, 58, "s12")}
    s_mov_b32 s26, 8192
    v_lshlrev_b32 v12, 3, v2
    v_and_b32 v8, 1, v3
    v_lshl_add_u32 v12, v8, 10, v12
    v_lshrrev_b32 v8, 1, v3
    v_lshl_add_u32 v12, v8, 12, v12
    v_mul_u32_u24 v8, {4*49152}, v8
    v_add_u32 v8, v8, v6
    v_lshl_add_u32 v11, v3, 9, v11
    s_mov_b32 s44, {fbits(-LOG2E)}
    s_mul_i32 s47, s32, 25600
    s_lshl_b32 s8, s14, 11
    s_add_u32 s8, s8, {FL_OFF+FL_A}
    s_lshr_b32 s35, s15, 2
    s_lshl_b32 s35, s35, 7
    s_add_u32 s39, s8, s35
    s_and_b32 s35, s15, 3
    s_lshl_b32 s35, s35, 4
    s_add_u32 s39, s39, s35
    s_lshl_b32 s35, s32, 2
    s_add_u32 s39, s39, s35
    s_lshl_b32 s35, s32, 7
    s_add_u32 s8, s8, s35
    s_mul_i32 s12, s33, {4*49152}
    s_mul_i32 s35, s32, 12288
    s_add_u32 s12, s12, s35
    s_add_u32 s12, s12, {AF_OFF}
    {setbase(56, 58, "s12")}
    s_mul_i32 s35, s32, 5376
    s_add_u32 s35, s35, {L_E}
    v_mul_u32_u24 v{VPW}, 336, v2
    v_lshl_add_u32 v{VPW}, v3, 4, v{VPW}
    v_add_u32 v{VPW}, s35, v{VPW}
    v_mul_u32_u24 v5, 6554, v1
    v_lshrrev_b32 v5, 16, v5
    v_mul_u32_u24 v6, 10, v5
    v_sub_u32 v6, v1, v6
    v_min_u32 v5, 3, v5
    s_lshl_b32 s35, s32, 2
    v_add_u32 v5, s35, v5
    v_mul_u32_u24 v{VPR}, 336, v5
    v_lshl_add_u32 v{VPR}, v6, 5, v{VPR}
    v_add_u32 v{VPR}, {L_E}, v{VPR}
    v_lshlrev_b32 v{VHA}, 4, v5
    v_lshl_add_u32 v{VHA}, v6, 8, v{VHA}
    v_mul_u32_u24 v{VOUT}, 1280, v5
    v_lshl_add_u32 v{VOUT}, v6, 4, v{VOUT}
    v_mov_b32 v5, 0x7ff00000
    v_cmp_gt_u32 vcc, 40, v1
    s_mul_i32 s40, s33, {64*1280}
    s_mul_i32 s35, s34, 2560
    s_add_u32 s45, s40, s35
    s_add_u32 s45, s45, {HF_OFF}
    v_cndmask_b32 v{VOUT}, v5, v{VOUT}, vcc
    s_mul_i32 s35, s34, 160
    s_add_u32 s40, s40, s35
    """)
    srd(a, 4, 50, XB)
    a.wait(hst)
    flag(a, "s43")
    def a_dma(i):
        return [f"s_add_u32 m0, s41, {(i%3)*20480}\n" + setbase(16, 48, order[i] * 20480)] + \
               [f"buffer_load_dwordx4 v4, s[16:19], 0 offen offset:{1024*k} sc1 lds" for k in range(4)] + \
               ["s_add_u32 m0, m0, 4096", tk(("a", i), f"buffer_load_dwordx4 v{V4K}, s[16:19], 0 offen sc1 lds")]
    d0 = a_dma(0)
    emit(a, d0.pop(0))
    poll(a, "h", "buffer_load_dword v14, v9, s[28:31], s42 offen sc1", "v_cmp_eq_u32 vcc, 0, v14")
    stamp(a, "hflag")
    run(d0 + a_dma(1))
    def st_items(j):
        return [tk(("st", j), f"buffer_load_dwordx2 v[{VS+16*j+2*c}:{VS+16*j+2*c+1}], v12, s[24:27], 0 offen offset:{2048*j+128*c} sc1") for c in range(8)]
    def stats(j):
        b = VS + 16 * j
        o = [wt(("st", j))]
        for c in range(1, 8):
            o += [f"v_add_f32 v{b}, v{b}, v{b+2*c}", f"v_add_f32 v{b+1}, v{b+1}, v{b+2*c+1}"]
        m, v, r = VST + 8 * j, VST + 8 * j + 1, VST + 8 * j + 2
        return o + [f"v_mul_f32 v{m}, {fbits(1/640)}, v{b}", f"v_mul_f32 v{v}, {fbits(1/640)}, v{b+1}",
                    f"v_fma_f32 v{v}, -v{m}, v{m}, v{v}", f"v_max_f32 v{v}, 0, v{v}", f"v_add_f32 v{v}, {fbits(1e-5)}, v{v}",
                    f"v_mov_b32 v{m+4}, v{m}", f"v_rsq_f32 v{r}, v{v}", f"v_mov_b32 v{v+4}, v{v}", f"v_mul_f32 v{r}, s44, v{r}",
                    f"v_mov_b32 v{r+4}, v{r}", f"v_permlane16_swap_b32 v{m}, v{m+4}", f"v_permlane16_swap_b32 v{v}, v{v+4}",
                    f"v_permlane16_swap_b32 v{r}, v{r+4}"]

    def corr(d, x, cs, m, k):
        return [f"v_fma_f32 v{d+i}, -v{m}, v{cs+i}, v{x+i}" for i in range(k)]

    def act4(g, u, m, pk):
        o = weave([[f"v_mul_f32 v{VT_+i}, v{g+i}, v{m+2}", f"v_exp_f32 v{VT_+i}, v{VT_+i}", f"v_mul_f32 v{g+i}, v{g+i}, v{u+i}",
                    f"v_fma_f32 v{VT_+i}, v{VT_+i}, v{m+1}, v{m+1}", f"v_rcp_f32 v{VT_+i}, v{VT_+i}",
                    f"v_mul_f32 v{g+i}, v{g+i}, v{VT_+i}"] for i in range(4)])
        return o + [f"v_cvt_pk_bf16_f32 v{pk}, v{g}, v{g+1}", f"v_cvt_pk_bf16_f32 v{pk+1}, v{g+2}, v{g+3}"]

    def epilogue(i):
        p, c = i >> 1, VC + 12 * (i & 1)
        def st(k):
            line = [f"buffer_store_dwordx2 v[{VPK}:{VPK+1}], v7, s[28:31], s46 offen",
                    f"buffer_store_dwordx2 v[{VPK+2}:{VPK+3}], v7, s[28:31], s35 offen",
                    f"buffer_store_dwordx2 v[{VPK+4}:{VPK+5}], v8, s[28:31], s46 offen offset:512"][k]
            def f():
                T["as", p, k] = dual(a, [line], LOC_A)
            return F(f, 2)
        if i % 2 == 0:
            o = []
            for k in range(3):
                o += [f"v_mov_b32 v{VK_+k}, v{VST+4*p+k}", f"v_mov_b32 v{VK_+4+k}, v{VST+4*p+k}"]
            o += [f"v_permlane32_swap_b32 v{VK_+k}, v{VK_+4+k}" for k in range(3)]
            o += corr(VG, c, VCS, VK_, 8) + corr(VMX, c + 8, VCS + 8, VK_, 4)
            return o, act4(VG, VG + 4, VK_, VPK) + [st(0)]
        o = corr(VMX + 4, c + 8, VCS + 8, VK_ + 4, 4) + corr(VG, c, VCS, VK_ + 4, 8)
        r = act4(VG, VG + 4, VK_ + 4, VPK + 2)
        r2 = [f"v_permlane32_swap_b32 v{VMX+k}, v{VMX+4+k}" for k in range(4)] + act4(VMX, VMX + 4, VST + 4 * p, VPK + 4)
        return o, r + [f"s_add_u32 s35, s46, {4*49152}", st(1)] + r2 + [st(2), "s_add_u32 s46, s46, 49152"]

    def signal(p):
        def f():
            a.wait(T["as", p, 2])
            flag(a, "s39", 512 * p)
        return F(f, 2)
    apl = "buffer_load_dword v14, v11, s[28:31], s8 offen sc1"
    def acheck(j):
        return F(lambda: poll(a, f"a{j}", apl, "v_cmp_eq_u32 vcc, 0, v14", T["ap", j], 0xffff << (16 * j)), 2)
    def act_items(j):
        o = []
        for s in range(12):
            k = 12 * j + s
            if s % 4 == 0:
                o.append(setbase(16, 56, j * 49152 + s * 1024))
            o.append(tk(("f", k), f"buffer_load_dwordx4 {r4('a', AACT + 4*(k % NACT))}, v4, s[16:19], 0 offen offset:{1024*(s&3)} sc1"))
        return o

    wdq = wd_items(NWR, NWR + NWL, True) + wd_items(WD1, NWR) + wd_items(55, 56)
    def do_rd(i):
        mi, s = divmod(i, 20)
        if s == 0:
            a.wait(T["a", mi])
            a("s_barrier")
        T["r", i] = a(f"ds_read_b128 {r4('v', VF + 4*(i % NF))}, v13 offset:{(mi%3)*20480 + s*1024}")
    AHEAD = NF - 1
    for i in range(AHEAD):
        do_rd(i)
    a.wait(T["r", 0])
    stamp(a, "gu0")
    mq = st_items(0) + a_dma(2) + st_items(1)
    ep = []
    SG = opt("sg", 4 if not LOC_A else 0)
    for mi in range(8):
        c = VC + 12 * (mi & 1)
        must = 0
        if mi:
            e0, e1 = epilogue(mi - 1)
            must = len(e1)
        for s in range(20):
            i = mi * 20 + s
            if mi and s == 2:
                ep += e0 + e1
            if (mi, s) == (0, 11):
                ep += stats(0)
            if (mi, s) == (0, 17):
                ep += stats(1)
                must = 10 ** 6
            if mi in (4, 6) and s == SG:
                mq.append(signal((mi - 4) // 2))
            if (mi, s) == (6, 10):
                mq.append(tk(("ap", 0), apl))
            if (mi, s) == (6, 17):
                mq.append(acheck(0))
            if (mi, s) == (7, 1):
                mq += act_items(0)
                mq.insert(8, tk(("ap", 1), apl))
            if (mi, s) == (7, 15):
                mq += [acheck(1)] + act_items(1)
            for t in range(3):
                cc = r4("v", c + 4 * t)
                a(mf16(cc, r4("a", 12 * s + 4 * t), r4("v", VF + 4 * (i % NF)), "0" if s == 0 else cc))
                budget, scalar = 2, 1
                if t == 2 and i + 1 < 160:
                    a.wait(T["r", i + 1])
                    scalar = 0
                if t == 0 and i + AHEAD < 160:
                    do_rd(i + AHEAD)
                    budget = 1
                    if (i + AHEAD) % 20 == 0 and mi + 2 < 8 and mi:
                        while wdq and cost(wdq[0]) and " lds" in wdq[0].text:
                            mq.append(wdq.pop(0))
                        mq += a_dma(mi + 2)
                if t == 1 or (t == 2 and not ep):
                    if mq:
                        popmem(mq)
                        budget = 0
                    elif wdq and (s % 3 == 0 or not ep):
                        popmem(wdq)
                        budget = 0
                gap(a, ep, budget, scalar)
        while len(ep) > must:
            emit(a, ep.pop(0))
        print(f"m{mi}: epilogue items carried {len(ep)}, mem {len(mq)}, down weights left {len(wdq)}", file=sys.stderr)
        stamp(a, f"m{mi}")
    assert not wdq

    DC, DH, DR = 16, 56, 76
    RB = 4 * 5376
    e0, e1 = epilogue(7)
    a("v_add_u32 v12, s47, v4")
    a.wait(T["wd", NWR + NWL - 1])
    lq = [tk(("wl", f), f"ds_read_b128 {wd_op(f)}, v12 offset:{1024*(f-NWR)}") for f in range(NWR, NWR + NWL)]
    mq = wd_items(56, 60) + [signal(2)] + mq

    def publish(j, pause):
        c = DC + 20 * (j & 1)
        o = [tk(("h", j), f"buffer_load_dwordx4 {r4('v', DH)}, v{VHA}, s[28:31], s45 offen sc1"), "s_add_u32 s45, s45, 20480"] if j < 3 else []
        for t in range(5):
            o += [f"ds_write_b128 v{VPW}, {r4('v', c+4*t)} offset:{RB*(j&1) + 64*t}"] + [None] * (2 * pause)
        o += [None] * (3 * pause) + ["s_waitcnt lgkmcnt(0)\ns_barrier"]
        o += [f"ds_read_b128 {r4('v', DR+8*k+4*h)}, v{VPR} offset:{RB*(j&1) + 5376*k + 16*h}" for k in range(4) for h in range(2)]
        o += [wt(("h", j))]
        for i in range(4):
            o += [f"v_lshlrev_b32 v{DH+4+2*i}, 16, v{DH+i}", f"v_and_b32 v{DH+5+2*i}, 0xffff0000, v{DH+i}"]
        if j == 2:
            o += [tk(("h", 3), f"buffer_load_dwordx4 {r4('v', DH)}, v{VHA}, s[28:31], s45 offen sc1")]
        o += [None] * pause + ["s_waitcnt lgkmcnt(6)"]
        o += [f"v_add_f32 v{DR+i}, v{DR+i}, v{DH+4+i}" for i in range(8)]
        o += ["s_waitcnt lgkmcnt(2)"]
        o += [f"v_add_f32 v{DR+8+i}, v{DR+8+i}, v{DR+16+i}" for i in range(8)]
        o += ["s_waitcnt lgkmcnt(0)"]
        o += [f"v_add_f32 v{DR+i}, v{DR+i}, v{DR+24+i}" for i in range(8)]
        o += [f"v_add_f32 v{DR+i}, v{DR+i}, v{DR+8+i}" for i in range(8)]
        o += [f"v_cvt_pk_bf16_f32 v{DH+12+i}, v{DR+2*i}, v{DR+2*i+1}" for i in range(4)]
        o += [f"buffer_store_dwordx4 {r4('v', DH+12)}, v{VOUT}, s[4:7], s40 offen", f"s_add_u32 s40, s40, {16*1280}"]
        return o

    stamp(a, "dn0")
    for j in range(4):
        c = DC + 20 * (j & 1)
        for s in range(12):
            k = 12 * j + s
            if (j, s) == (0, 1):
                ep += e0 + e1 + ["s_barrier"]
            if j and s == 1:
                ep += publish(j - 1, 1)
            if (j, s) == (0, opt("ap2", 8)):
                mq.append(tk(("ap", 2), apl))
            if (j, s) == (1, 0):
                mq += [acheck(2)] + act_items(2)
            if (j, s) == (1, opt("sg3", 7)):
                mq.append(signal(3))
            if (j, s) == (2, opt("ap3", 1)):
                mq.append(tk(("ap", 3), apl))
            if (j, s) == (2, opt("ap3", 1) + 3):
                mq += [acheck(3)] + act_items(3)
            for t in range(5):
                f = 5 * s + t
                if (j, f) == (0, 0):
                    a.wait(T["f", 0])
                cc = r4("v", c + 4 * t)
                a(mf16(cc, wd_op(f), r4("a", AACT + 4 * (k % NACT)), "0" if s == 0 else cc))
                need = []
                if t == 4 and k + 1 < 48:
                    while ("f", k + 1) not in T:
                        popmem(mq)
                    need.append(T["f", k + 1])
                if j == 0 and NWR <= f + 1 < 60:
                    need.append(T["wl", f + 1] if f + 1 < NWR + NWL else T["wd", f + 1])
                a.wait(*need)
                budget = 2
                if mq and t in (1, 3):
                    popmem(mq)
                    budget = 0
                elif lq:
                    emit(a, lq.pop(0))
                    budget = 1
                gap(a, ep, budget, 0 if need else 1)
        print(f"d{j}: epilogue items left {len(ep)}, mem {len(mq)}", file=sys.stderr)
        run(ep)
        ep = []
        stamp(a, f"d{j}")
    run(publish(3, 0))
    a.label("L_end")
    a("s_endpgm")
    for c in a.cold:
        c()
    a.raw(".p2align 8")
    a.label("L_code_end")
    return n


def build():
    a = Asm()
    n = kernel(a)
    s = open("cdna_kernels/%s.s.ref" % NAME).read().split("; Override launch")[0]
    s += "; @launch grid=(256,1,1) block=(256,1,1) lds=163840\n"
    s += '.amdgcn_target "amdgcn-amd-amdhsa--gfx950"\n.text\n' + a.text()
    s += f""".section .rodata,"a"
.p2align 6
.amdhsa_kernel {n}
  .amdhsa_next_free_vgpr 512
  .amdhsa_next_free_sgpr 102
  .amdhsa_accum_offset 256
  .amdhsa_group_segment_fixed_size 0
  .amdhsa_kernarg_size 96
  .amdhsa_user_sgpr_count 2
  .amdhsa_user_sgpr_kernarg_segment_ptr 1
  .amdhsa_system_sgpr_workgroup_id_x 1
.end_amdhsa_kernel
"""
    return s


if __name__ == "__main__":
    OPT.update(sys.argv[2:])
    out = sys.argv[1] if len(sys.argv) > 1 else "v4.s"
    open(out, "w").write(build())
```

```python
import re, sys
def mk(src, dst, stamp, K):
    out = []
    for l in open(src).read().split("\n"):
        if re.match(r"^\w+_kernel:", l):
            out += [l, "    s_memrealtime s[90:91]", "    s_load_dwordx2 s[94:95], s[0:1], 80", "    v_readfirstlane_b32 s96, v0"]
            if stamp == "start": out.append("    s_memrealtime s[92:93]")
            else: out.append("    s_mov_b64 s[92:93], 0\n    s_nop 0")
            continue
        if l.strip() == f"; stamp {stamp}":
            out.append("    s_memrealtime s[92:93]"); continue
        if l.strip() == "L_end:":
            if stamp == "end": out.append("    s_waitcnt vmcnt(0)\n    s_memrealtime s[92:93]")
            out.append(f"""    s_waitcnt vmcnt(0) lgkmcnt(0)
    s_barrier
    s_cmp_lg_u32 s96, 0
    s_cbranch_scc1 L_end
    s_mov_b64 exec, 1
    v_mov_b32 v1, 0
    s_not_b32 s97, s90
    v_mov_b32 v2, s97
    v_mov_b32 v3, s92
    global_atomic_umax v1, v2, s[94:95] offset:128 sc1
    global_atomic_umax v1, v3, s[94:95] offset:192 sc1
    s_waitcnt vmcnt(0)
    v_mov_b32 v2, 1
    global_atomic_add v4, v1, v2, s[94:95] offset:64 sc0 sc1
    s_waitcnt vmcnt(0)
    v_readfirstlane_b32 s97, v4
    s_nop 3
    s_cmp_lg_u32 s97, 255
    s_cbranch_scc1 L_end
    global_load_dword v2, v1, s[94:95] offset:128 sc1
    global_load_dword v3, v1, s[94:95] offset:192 sc1
    s_memrealtime s[98:99]
    s_waitcnt vmcnt(0) lgkmcnt(0)
    v_not_b32 v2, v2
    v_sub_u32 v2, v3, v2
    v_min_u32 v2, 6000, v2
    global_store_dword v1, v2, s[94:95] offset:4
    v_readfirstlane_b32 s97, v2
    s_nop 3
    s_mul_i32 s97, s97, {K}
L_leak:
    s_memrealtime s[100:101]
    s_waitcnt lgkmcnt(0)
    s_sub_u32 s100, s100, s98
    s_cmp_lt_u32 s100, s97
    s_cbranch_scc1 L_leak""")
        out.append(l)
    open(dst, "w").write("\n".join(out))
src = sys.argv[1]
for i, (st, k) in enumerate([("end", 0)] + [(x, 4) for x in sys.argv[2:]]):
    mk(src, f"l{i}.s", st, k)
```
